```python
import torch

def _softmax(x, axis=-1):
    return torch.softmax(x, dim=axis)
def _gelu(x):
    return torch.nn.functional.gelu(x, approximate="tanh")
def _silu(x):
    return torch.nn.functional.silu(x)
def _sigmoid(x):
    return torch.sigmoid(x)
def _layernorm(x, axis=-1, eps=1e-5):
    m = x.mean(dim=axis, keepdim=True)
    v = x.var(dim=axis, keepdim=True, unbiased=False)
    return (x - m) / torch.sqrt(v + eps)
def _scatter_add(tgt, idx, src, axis=0):
    return tgt.clone().index_add_(axis, idx, src)
def _segment_sum(src, seg, n):
    out = torch.zeros((n,) + src.shape[1:], dtype=src.dtype)
    return out.index_add_(0, seg, src)
def _pad(x, pw):
    flat = tuple(v for pair in reversed(pw) for v in pair)
    return torch.nn.functional.pad(x, flat)

kernel_name = 'recurrent_scan__spectral_gfnet__dense_activation_squared_relu__prompt'

def setup_inputs():

    _w = (lambda a: (lambda t: t.to(torch.bfloat16) if t.is_floating_point() else t)(torch.as_tensor(a)))
    def _A_setup():
        B, S, D = 1, 2048, 576
        Df = D // 2 + 1
        return {
            "x": _w((lambda *s: torch.randn(*s, dtype=torch.bfloat16) * 0.05)(B, S, D)),
            "w_r": _w((lambda *s: torch.randn(*s, dtype=torch.bfloat16) * 0.05)(S, Df) * 0.02),
            "w_i": _w((lambda *s: torch.randn(*s, dtype=torch.bfloat16) * 0.05)(S, Df) * 0.02),
        }
    _A_in = _A_setup()

    def _B_setup():
        B, S, D, F = 1, 2048, 576, 4608
        return {
            "x": _w((lambda *s: torch.randn(*s, dtype=torch.bfloat16) * 0.05)(B, S, D)),
            "w1": _w((lambda *s: torch.randn(*s, dtype=torch.bfloat16) * 0.05)(D, F)),
            "b1": _w((lambda *s: torch.randn(*s, dtype=torch.bfloat16) * 0.4)(F)),
            "w2": _w((lambda *s: torch.randn(*s, dtype=torch.bfloat16) * 0.05)(F, D)),
            "b2": _w((lambda *s: torch.randn(*s, dtype=torch.bfloat16) * 3.2)(D)),
        }
    _B_in = _B_setup()

    return {
        "A_x": _A_in["x"],
        "A_w_r": _A_in["w_r"],
        "A_w_i": _A_in["w_i"],
        "B_x": _B_in["x"],
        "B_w1": _B_in["w1"],
        "B_b1": _B_in["b1"],
        "B_w2": _B_in["w2"],
        "B_b2": _B_in["b2"],
    }

def reference(A_x, A_w_r, A_w_i, B_x, B_w1, B_b1, B_w2, B_b2):
    def _A_ref(x, w_r, w_i):
        B, S, D = x.shape
        X = (lambda x, axes=(-2,-1): torch.fft.rfft2(x.float(), dim=axes))(x, axes=(-2, -1))
        W = w_r + 1j * w_i
        X = X * W
        y = (lambda x, s, axes=(-2,-1): torch.fft.irfft2(x, s=s, dim=axes).to(torch.bfloat16))(X, (S, D), axes=(-2, -1))
        return y

    def _B_ref(x, w1, b1, w2, b2):
        h = torch.einsum("bsd,df->bsf", x, w1) + b1
        zero = torch.zeros_like(h)
        r = torch.where(h > zero, h, zero)
        h = r * r
        out = torch.einsum("bsf,fd->bsd", h, w2) + b2
        return out

    x = A_x
    xn = _layernorm(x, axis=-1)
    s = _A_ref(xn, A_w_r, A_w_i)
    g = _silu(_B_ref(xn, B_w1, B_b1, B_w2, B_b2))
    return x + s * g
```

```python
NAME = "recurrent_scan__spectral_gfnet__dense_activation_squared_relu__prompt"
class Asm:
    def __init__(self):
        self.L = []
    def __call__(self, s):
        for line in s.split("\n"):
            line = line.strip()
            if line:
                self.L.append(line if line.endswith(":") else "  " + line)
    def text(self):
        return "\n".join(self.L) + "\n"
def kernel_header(name):
    return f".text\n.globl {name}\n.p2align 8\n.type {name},@function\n{name}:\n"
def kernel_desc(name, vgpr=256, sgpr=96, accum=None):
    if accum is None: accum = min(256, (vgpr + 3) // 4 * 4)
    return ('.section .rodata,"a"\n.p2align 6\n'
        f".amdhsa_kernel {name}\n  .amdhsa_next_free_vgpr {vgpr}\n  .amdhsa_next_free_sgpr {sgpr}\n  .amdhsa_accum_offset {accum}\n"
        "  .amdhsa_group_segment_fixed_size 0\n  .amdhsa_kernarg_size 88\n  .amdhsa_user_sgpr_count 2\n  .amdhsa_user_sgpr_kernarg_segment_ptr 1\n  .amdhsa_system_sgpr_workgroup_id_x 1\n.end_amdhsa_kernel\n")
def srd(A, d, base, nbytes):
    A(f"s_mov_b32 s{d}, s{base}\ns_mov_b32 s{d+1}, s{base+1}\ns_mov_b32 s{d+2}, {nbytes}\ns_mov_b32 s{d+3}, 0x00020000")
```

```python
from asmlib import *
import gen_main as G
from gen_main import f32bits
import math

def swz_reduce(A, regs, tmp):
    for off in (0x041F, 0x081F, 0x101F, 0x201F, 0x401F):
        for i, r in enumerate(regs): A(f"ds_swizzle_b32 v{tmp+i}, v{r} offset:{off}")
        A("s_waitcnt lgkmcnt(0)")
        for i, r in enumerate(regs): A(f"v_add_f32 v{r}, v{r}, v{tmp+i}")

def bf16r(A, dst, src):
    A(f"v_cvt_pk_bf16_f32 v{dst}, v{src}, v{src}\nv_and_b32 v{dst}, 0xffff0000, v{dst}")

def gen_prep_kernel(name):
    A = Asm()
    A("s_cmp_ge_u32 s2, 256\ns_cbranch_scc1 L_prep_exit")
    A("s_load_dwordx2 s[4:5], s[0:1], 0\ns_load_dwordx2 s[8:9], s[0:1], 32\ns_load_dwordx2 s[16:17], s[0:1], 80")
    A(f"s_mov_b32 s6, 2359296\ns_mov_b32 s7, 0x00020000\ns_mov_b32 s10, 5308416\ns_mov_b32 s11, 0x00020000\ns_mov_b32 s18, {G.WS_SIZE}\ns_mov_b32 s19, 0x00020000")
    A("v_lshrrev_b32 v1, 5, v0\nv_and_b32 v2, 31, v0\nv_mul_u32_u24 v3, 1152, v1\nv_lshl_add_u32 v3, v2, 2, v3")
    A(f"s_mul_i32 s20, s2, {8*1152}")
    A("s_waitcnt lgkmcnt(0)")
    for i in range(9): A(f"buffer_load_dword v{10+i}, v3, s[4:7], s20 offen offset:{128*i}")
    A("s_lshr_b32 s21, s2, 4\ns_and_b32 s22, s2, 15")
    A(f"s_mul_i32 s23, s21, {36*9216}\ns_mul_i32 s24, s22, 576\ns_add_u32 s23, s23, s24")
    A("v_min_u32 v4, 143, v0\nv_lshlrev_b32 v4, 2, v4")
    for i in range(36):
        A(f"buffer_load_dword v{64+i}, v4, s[8:11], s23 offen")
        A("s_add_u32 s23, s23, 9216")
    A("s_waitcnt vmcnt(36)")
    for i in range(9):
        A(f"v_lshlrev_b32 v{20+2*i}, 16, v{10+i}\nv_and_b32 v{21+2*i}, 0xffff0000, v{10+i}")
    A("v_mov_b32 v5, v20\nv_mov_b32 v6, v21")
    for i in range(1, 9): A(f"v_add_f32 v5, v5, v{20+2*i}\nv_add_f32 v6, v6, v{21+2*i}")
    swz_reduce(A, [5, 6], 40)
    A(f"v_add_f32 v7, v5, v6\nv_mul_f32 v8, {1.0/576}, v7")
    A("v_mov_b32 v9, 0")
    for i in range(18): A(f"v_sub_f32 v40, v{20+i}, v8\nv_fmac_f32 v9, v40, v40")
    swz_reduce(A, [9], 40)
    A(f"v_mul_f32 v9, {1.0/576}, v9")
    bf16r(A, 8, 8)
    bf16r(A, 9, 9)
    A(f"v_add_f32 v9, {1e-5}, v9"); bf16r(A, 9, 9)
    A("v_sqrt_f32 v9, v9\ns_nop 0"); bf16r(A, 9, 9)
    A("v_rcp_f32 v46, v9")
    A("v_xor_b32 v40, 0x80000000, v8\nv_lshrrev_b32 v41, 16, v40\nv_or_b32 v44, v40, v41\nv_or_b32 v45, v9, v41\nv_mov_b32 v47, 0")
    A(f"v_mul_f32 v40, 576.0, v8\nv_sub_f32 v40, v7, v40\nv_mul_f32 v48, v46, v40\nv_mov_b32 v49, 0")
    A(f"v_sub_f32 v40, v5, v6\nv_mul_f32 v50, v46, v40\nv_mov_b32 v51, 0")
    A("v_cmp_eq_u32 vcc, 0, v2\ns_and_saveexec_b64 s[26:27], vcc")
    A(f"s_lshl_b32 s20, s2, 7\ns_add_u32 s20, s20, {G.WS_STATS}\nv_lshlrev_b32 v3, 4, v1")
    A("buffer_store_dwordx4 v[44:47], v3, s[16:19], s20 offen")
    A(f"s_lshl_b32 s20, s2, 6\ns_add_u32 s20, s20, {G.WS_X1}\nv_lshlrev_b32 v3, 3, v1\ns_add_u32 s25, s20, {288*16384}")
    A("buffer_store_dwordx2 v[48:49], v3, s[16:19], s20 offen\nbuffer_store_dwordx2 v[50:51], v3, s[16:19], s25 offen")
    A("s_mov_b64 exec, s[26:27]")
    A("s_waitcnt vmcnt(3)")
    A("v_mov_b32 v52, 0\nv_mov_b32 v53, 0")
    for i in range(36):
        A(f"v_lshlrev_b32 v40, 16, v{64+i}\nv_and_b32 v41, 0xffff0000, v{64+i}\nv_add_f32 v52, v52, v40\nv_add_f32 v53, v53, v41")
    A("v_cmp_gt_u32 vcc, 0x90, v0\ns_and_saveexec_b64 s[26:27], vcc\ns_cbranch_execz L_prep_exit")
    A(f"s_mul_i32 s20, s21, 18432\ns_mul_i32 s24, s22, 1152\ns_add_u32 s20, s20, s24\ns_add_u32 s20, s20, {G.WS_CS}\nv_lshlrev_b32 v3, 3, v0")
    A("buffer_store_dwordx2 v[52:53], v3, s[16:19], s20 offen")
    A("L_prep_exit:\ns_endpgm")
    return kernel_header(name) + A.text() + kernel_desc(name, 104, 32)

F_ZI = 0
F_PQ = 18432
F_GT = 45056
F_LDS = 63744
def gen_final_kernel(name):
    A = Asm()
    A("s_cmp_ge_u32 s2, 256\ns_cbranch_scc1 L_fin_exit")
    A("s_load_dwordx2 s[4:5], s[0:1], 0\ns_load_dwordx2 s[8:9], s[0:1], 56\ns_load_dwordx2 s[12:13], s[0:1], 64\ns_load_dwordx2 s[16:17], s[0:1], 80")
    A(f"s_mov_b32 s6, 2359296\ns_mov_b32 s7, 0x00020000\ns_mov_b32 s10, 1152\ns_mov_b32 s11, 0x00020000\ns_mov_b32 s14, 2359296\ns_mov_b32 s15, 0x00020000\ns_mov_b32 s18, {G.WS_SIZE}\ns_mov_b32 s19, 0x00020000")
    A("v_lshrrev_b32 v1, 6, v0\ns_nop 0\nv_readfirstlane_b32 s24, v1")
    A("s_and_b32 s40, s2, 1\ns_lshl_b32 s40, s40, 3\ns_lshr_b32 s41, s2, 5\ns_add_u32 s25, s40, s41")
    A("s_bfe_u32 s40, s2, 0x20001\ns_lshl_b32 s40, s40, 2\ns_bfe_u32 s41, s2, 0x20003\ns_add_u32 s26, s40, s41")
    A("s_lshr_b32 s27, s26, 1\ns_and_b32 s28, s26, 1")
    A("s_lshl_b32 s29, s25, 3\ns_add_u32 s29, s29, s27")
    A("v_and_b32 v1, 63, v0")
    A("s_waitcnt lgkmcnt(0)")
    A(f"s_mul_i32 s30, s29, 18496\ns_add_u32 s30, s30, {G.WS_Z}")
    for it in range(5):
        if it == 4: A("s_cmp_ge_u32 s24, 2\ns_cbranch_scc1 L_fin_zd")
        A(f"s_lshl_b32 s40, s24, 4\ns_add_u32 s40, s40, {64*it}")
        A("v_lshrrev_b32 v2, 2, v1\nv_add_u32 v2, s40, v2")
        A("v_lshlrev_b32 v3, 7, v2\nv_cmp_le_u32 vcc, 0x90, v2\nv_mov_b32 v4, 0\nv_mov_b32 v5, " + str(144*128 - 64))
        A("v_cndmask_b32 v4, v4, v5, vcc\nv_sub_u32 v3, v3, v4\nv_and_b32 v4, 3, v1\nv_lshl_add_u32 v3, v4, 4, v3")
        A(f"s_lshl_b32 s40, s24, 10\ns_add_u32 m0, s40, {4096*it + F_ZI}\ns_nop 0")
        A("buffer_load_dwordx4 v3, s[16:19], s30 offen lds")
    A("L_fin_zd:")
    GB = 64
    ACC = 176
    A("s_and_b32 s31, s24, 1\ns_lshr_b32 s32, s24, 1")
    A("s_mul_i32 s40, s28, 72\ns_mul_i32 s41, s32, 48\ns_add_u32 s40, s40, s41")
    A("v_and_b32 v2, 15, v1\nv_add_u32 v2, s40, v2\nv_cvt_f32_u32 v2, v2")
    A("v_lshrrev_b32 v3, 5, v1\nv_lshlrev_b32 v3, 4, v3\nv_add_u32 v3, s31, v3\nv_cvt_f32_u32 v3, v3")
    A("v_bfe_u32 v4, v1, 4, 1\nv_cvt_f32_u32 v4, v4\nv_mul_f32 v4, 0.25, v4")
    for t in range(3):
        A(f"v_add_f32 v5, {16.0*t}, v2\nv_mul_f32 v5, {1.0/576}, v5")
        A("v_fma_f32 v6, v5, v3, v4")
        for kap in range(9):
            g = GB + 4 * (9 * t + kap)
            for i in range(8):
                A(f"v_fmamk_f32 v{8+i}, v5, {f32bits(float(32*kap+2*i))}, v6")
            for i in range(8): A(f"v_cos_f32 v{8+i}, v{8+i}")
            if kap == 0:
                A("v_cmp_eq_f32 vcc, 0, v3\nv_mul_f32 v16, 0.5, v8\ns_nop 0\nv_cndmask_b32 v8, v8, v16, vcc")
            for x in range(4): A(f"v_cvt_pk_bf16_f32 v{g+x}, v{8+2*x}, v{9+2*x}")
    A("v_lshrrev_b32 v2, 5, v1\nv_lshlrev_b32 v2, 3, v2\nv_bfe_u32 v3, v1, 2, 2\nv_add_u32 v2, v2, v3\nv_lshlrev_b32 v2, 6, v2")
    A("v_bfe_u32 v3, v1, 4, 1\nv_lshlrev_b32 v3, 5, v3\nv_and_b32 v4, 3, v1\nv_lshlrev_b32 v4, 3, v4\nv_add3_u32 v2, v2, v3, v4")
    A(f"s_mul_i32 s40, s31, {144*64}\ns_add_u32 s40, s40, {F_ZI}\nv_add_u32 v2, s40, v2")
    A("s_waitcnt vmcnt(0)\ns_barrier")
    for kap in range(9):
        b = 24 + 4 * kap
        A(f"ds_read_b64_tr_b16 v[{b}:{b+1}], v2 offset:{kap*1024}\nds_read_b64_tr_b16 v[{b+2}:{b+3}], v2 offset:{kap*1024+256}")
        if kap == 4: A("s_waitcnt lgkmcnt(0)")
    A("s_waitcnt lgkmcnt(0)")
    for kap in range(9):
        b = 24 + 4 * kap
        for t in range(3):
            g = GB + 4 * (9 * t + kap); acc = ACC + 16 * t
            c = "0" if kap == 0 else f"v[{acc}:{acc+15}]"
            A(f"v_mfma_f32_32x32x16_bf16 v[{acc}:{acc+15}], v[{g}:{g+3}], v[{b}:{b+3}], {c}")
    A("v_and_b32 v2, 1, v1\nv_cmp_eq_u32 vcc, 0, v2\nv_mov_b32 v3, -1.0\nv_mov_b32 v4, 1.0\nv_cndmask_b32 v3, v3, v4, vcc")
    A("v_bfe_u32 v4, v1, 1, 4\nv_lshl_add_u32 v4, v2, 4, v4\nv_mul_u32_u24 v4, 416, v4")
    A(f"s_mul_i32 s40, s31, {2*16*416}\ns_add_u32 s40, s40, {F_PQ}\nv_add_u32 v4, s40, v4")
    A("v_lshrrev_b32 v5, 5, v1\nv_lshlrev_b32 v5, 4, v5\ns_mul_i32 s40, s32, 192\nv_add_u32 v5, s40, v5")
    A("v_sub_u32 v6, 0x180, v5\nv_cndmask_b32 v5, v6, v5, vcc\nv_add_u32 v4, v4, v5")
    A("v_mov_b32 v5, -4\nv_mov_b32 v6, 4\nv_cndmask_b32 v5, v5, v6, vcc\ns_nop 7\ns_nop 3")
    for t in range(3):
        acc = ACC + 16 * t
        for rr in range(8): A(f"v_cndmask_b32 v{8+rr}, v{acc+8+rr}, v{acc+rr}, vcc")
        for rr in range(8): A(f"v_mul_f32 v{16+rr}, v3, v{8+rr}")
        for rr in range(8): A(f"v_add_f32_dpp v{16+rr}, v{8+rr}, v{16+rr} quad_perm:[1,0,3,2] row_mask:0xf bank_mask:0xf")
        for rr in range(8):
            off = 16 * t + 8 * (rr >> 2) + (rr & 3)
            A(f"v_mad_i32_i24 v{8+rr}, v5, {off}, v4")
        for rr in range(8): A(f"ds_write_b32 v{8+rr}, v{16+rr}")
    A("v_lshrrev_b32 v2, 5, v1\nv_lshlrev_b32 v2, 12, v2\nv_bfe_u32 v3, v1, 4, 1\nv_lshl_add_u32 v2, v3, 9, v2\nv_and_b32 v4, 15, v1\nv_lshl_add_u32 v2, v4, 4, v2")
    A("s_lshr_b32 s40, s27, 1\ns_lshl_b32 s40, s40, 10\ns_and_b32 s41, s27, 1\ns_lshl_b32 s41, s41, 8\ns_add_u32 s40, s40, s41\nv_add_u32 v2, s40, v2")
    A(f"v_mul_u32_u24 v4, 1168, v4\nv_lshrrev_b32 v5, 5, v1\nv_lshl_add_u32 v4, v5, 6, v4\nv_lshl_add_u32 v4, v3, 4, v4\nv_add_u32 v4, {F_GT}, v4")
    A("s_lshl_b32 s40, s24, 7\nv_add_u32 v4, s40, v4")
    A("s_lshr_b32 s40, s25, 3\ns_and_b32 s41, s25, 7\ns_lshl_b32 s41, s41, 5\ns_add_u32 s40, s40, s41\ns_lshl_b32 s41, s28, 3\ns_add_u32 s40, s40, s41")
    A(f"s_mul_i32 s40, s40, 73728\ns_add_u32 s40, s40, {G.WS_PART}\ns_lshl_b32 s41, s24, 13\ns_add_u32 s33, s40, s41")
    for rnd in range(3):
        if rnd == 2: A("s_cmp_ge_u32 s24, 1\ns_cbranch_scc1 L_fin_f1d")
        for jp in range(8):
            dw = ((jp & 1) * 2) * 8 + (jp >> 1) * 2
            A(f"s_add_u32 s40, s33, {dw*73728 + rnd*4*8192}")
            A(f"buffer_load_dwordx4 v[{24+4*jp}:{27+4*jp}], v2, s[16:19], s40 offen")
        for jp in range(8):
            A(f"s_waitcnt vmcnt({7-jp})")
            for x in range(4):
                src = 24 + 4 * jp + x
                if jp == 0:
                    A(f"v_lshlrev_b32 v{8+2*x}, 16, v{src}\nv_and_b32 v{9+2*x}, 0xffff0000, v{src}")
                else:
                    A(f"v_lshlrev_b32 v16, 16, v{src}\nv_and_b32 v17, 0xffff0000, v{src}\nv_add_f32 v{8+2*x}, v{8+2*x}, v16\nv_add_f32 v{9+2*x}, v{9+2*x}, v17")
        A(f"ds_write_b128 v4, v[8:11] offset:{rnd*512}\nds_write_b128 v4, v[12:15] offset:{rnd*512+32}")
    A("L_fin_f1d:")
    A("s_waitcnt lgkmcnt(0)\ns_barrier")
    A("s_cmp_eq_u32 s28, 0\ns_cselect_b32 s42, 0, 144\ns_cselect_b32 s43, 9, 18\ns_cselect_b32 s44, 27, 99")
    A(f"s_mul_i32 s34, s29, {16*1152}")
    A(f"s_lshl_b32 s35, s29, 8\ns_add_u32 s35, s35, {G.WS_STATS}")
    A(f"s_add_u32 s36, s30, {288*64}")
    A(f"s_mov_b32 s37, {f32bits(2.0/(576*2048))}\ns_mov_b32 s38, {f32bits(-1.4426950408889634)}")
    for rnd in range(3):
        if rnd == 2: A("s_cmp_ge_u32 s24, 1\ns_cbranch_scc1 L_fin_exit")
        A(f"v_add_u32 v2, {256*rnd}, v0")
        G.div36(A, 3, 4, 2, 5)
        A("v_lshlrev_b32 v5, 4, v4\nv_add_u32 v5, s42, v5\nv_mov_b32 v7, 0x120")
        A("v_cmp_le_u32 vcc, s43, v4\ns_nop 1\nv_cndmask_b32 v6, 0, v7, vcc\nv_add_u32 v5, v5, v6")
        A("v_cmp_le_u32 vcc, s44, v4\ns_nop 1\nv_cndmask_b32 v6, 0, v7, vcc\nv_add_u32 v5, v5, v6")
        A("buffer_load_dwordx4 v[24:27], v5, s[8:11], 0 offen")
        A("v_mul_u32_u24 v6, 1152, v3\nv_add_u32 v60, v5, v6")
        A("buffer_load_dwordx4 v[28:31], v60, s[4:7], s34 offen")
        A("v_lshlrev_b32 v6, 4, v3\nbuffer_load_dword v61, v6, s[16:19], s35 offen offset:8")
        A("v_lshlrev_b32 v6, 2, v3\nbuffer_load_dword v62, v6, s[16:19], s36 offen")
        A(f"v_mul_u32_u24 v6, 1168, v3\nv_lshl_add_u32 v6, v4, 5, v6\nv_add_u32 v6, {F_GT}, v6")
        A("ds_read_b128 v[32:35], v6\nds_read_b128 v[36:39], v6 offset:16")
        A(f"v_cvt_f32_u32 v6, v4\nv_add_f32 v6, 0.5, v6\nv_mul_f32 v6, {1.0/9}, v6\nv_cvt_u32_f32 v6, v6\nv_mul_u32_u24 v7, 9, v6\nv_sub_u32 v7, v4, v7")
        A("v_and_b32 v8, 1, v6\nv_lshl_add_u32 v9, v8, 4, v3\nv_mul_u32_u24 v9, 416, v9\nv_lshl_add_u32 v9, v7, 5, v9\nv_mul_u32_u24 v8, 96, v8\nv_add_u32 v9, v9, v8")
        A(f"v_add_u32 v9, {F_PQ}, v9")
        A(f"ds_read_b128 v[40:43], v9\nds_read_b128 v[44:47], v9 offset:16\nds_read_b128 v[48:51], v9 offset:{2*16*416}\nds_read_b128 v[52:55], v9 offset:{2*16*416+16}")
        A("v_add_u32 v8, 1, v6\nv_and_b32 v8, 2, v8\nv_lshlrev_b32 v8, 30, v8\nv_xor_b32 v8, 1.0, v8")
        A("s_waitcnt vmcnt(0) lgkmcnt(0)")
        A("v_mul_f32 v61, v61, v61\nv_lshlrev_b32 v62, 16, v62\nv_mul_f32 v62, 0.5, v62")
        for e in range(8):
            bsrc = 24 + (e >> 1); xsrc = 28 + (e >> 1)
            un = (lambda d, s: f"v_lshlrev_b32 v{d}, 16, v{s}") if e % 2 == 0 else (lambda d, s: f"v_and_b32 v{d}, 0xffff0000, v{s}")
            A(un(10, bsrc))
            A(f"v_fma_f32 v10, v{32+e}, v61, v10")
            A("v_mul_f32 v11, s38, v10\nv_exp_f32 v11, v11")
            A(f"v_fma_f32 v12, v{48+e}, v8, v{40+e}")
            A(("v_add_f32" if e % 2 == 0 else "v_sub_f32") + " v12, v12, v62")
            A("v_add_f32 v11, 1.0, v11\nv_rcp_f32 v11, v11")
            A("v_mul_f32 v12, s37, v12")
            A(un(13, xsrc))
            A("v_mul_f32 v10, v10, v11")
            A(f"v_fma_f32 v{32+e}, v12, v10, v13")
        for x in range(4): A(f"v_cvt_pk_bf16_f32 v{56+x}, v{32+2*x}, v{33+2*x}")
        A("buffer_store_dwordx4 v[56:59], v60, s[12:15], s34 offen")
    A("L_fin_exit:\ns_endpgm")
    return kernel_header(name) + A.text() + kernel_desc(name, 224, 48)
```

```python
from asmlib import *
import gen_main as G
from gen_main import f32bits

class Pool:
    def __init__(self, base, n):
        self.free = [base + 2 * i for i in range(n)]
    def alloc(self): return self.free.pop(0)
    def release(self, r): self.free.insert(0, r)

class C:
    def __init__(self, pair, re=None, im=None):
        self.pair = pair
        self.re = re if re else (pair, 1)
        self.im = im if im else (pair + 1, 1)
    def muli(self, s):
        if s > 0: return C(self.pair, (self.im[0], -self.im[1]), self.re)
        return C(self.pair, self.im, (self.re[0], -self.re[1]))

def neg(r, s): return f"v{r}" if s > 0 else f"-v{r}"

class FFT:
    def __init__(self, A, pool, s_rt2):
        self.A, self.pool, self.k = A, pool, s_rt2
    def addc(self, dst, a, sa, b, sb):
        s1, s2 = sa * a[1], sb * b[1]
        if s1 > 0 and s2 > 0: self.A(f"v_add_f32 v{dst}, v{a[0]}, v{b[0]}")
        elif s1 > 0: self.A(f"v_sub_f32 v{dst}, v{a[0]}, v{b[0]}")
        elif s2 > 0: self.A(f"v_sub_f32 v{dst}, v{b[0]}, v{a[0]}")
        else: self.A(f"v_add_f32_e64 v{dst}, -v{a[0]}, -v{b[0]}")
    def fmak(self, dst, a, b, sb):
        self.A(f"v_fma_f32 v{dst}, {neg(b[0], sb * b[1])}, s{self.k}, {neg(a[0], a[1])}")
    def bfly(self, x, y, scaled=False, free=True):
        p, m = self.pool.alloc(), self.pool.alloc()
        if scaled:
            self.fmak(p, x.re, y.re, 1); self.fmak(p + 1, x.im, y.im, 1)
            self.fmak(m, x.re, y.re, -1); self.fmak(m + 1, x.im, y.im, -1)
        else:
            self.addc(p, x.re, 1, y.re, 1); self.addc(p + 1, x.im, 1, y.im, 1)
            self.addc(m, x.re, 1, y.re, -1); self.addc(m + 1, x.im, 1, y.im, -1)
        if free:
            self.pool.release(x.pair); self.pool.release(y.pair)
        return C(p), C(m)
    def rot45(self, x, s):
        p = self.pool.alloc()
        self.addc(p, x.re, 1, x.im, -s); self.addc(p + 1, x.im, 1, x.re, s)
        self.pool.release(x.pair)
        return C(p)
    def dft4(self, c, sg, odd_scaled=False):
        s0, s1 = self.bfly(c[0], c[2])
        s2, s3 = self.bfly(c[1], c[3])
        s3 = s3.muli(sg)
        o0, o2 = self.bfly(s0, s2, scaled=odd_scaled)
        o1, o3 = self.bfly(s1, s3, scaled=odd_scaled)
        return [o0, o1, o2, o3]
    def dft8(self, x, sg):
        a, b = [], []
        for i in range(4):
            p, m = self.bfly(x[i], x[i + 4]); a.append(p); b.append(m)
        b[1] = self.rot45(b[1], sg)
        b[2] = b[2].muli(sg)
        b[3] = self.rot45(b[3], sg).muli(sg)
        ea = self.dft4(a, sg)
        eb = self.dft4(b, sg, odd_scaled=True)
        return [ea[0], eb[0], ea[1], eb[1], ea[2], eb[2], ea[3], eb[3]]
    def twid(self, x, tw, sg):
        p = self.pool.alloc()
        self.A(f"v_mul_f32_e64 v{p}, {neg(*x.re)}, v{tw}")
        self.A(f"v_mul_f32_e64 v{p+1}, {neg(*x.im)}, v{tw}")
        self.A(f"v_fma_f32 v{p}, {neg(x.im[0], -sg * x.im[1])}, v{tw+1}, v{p}")
        self.A(f"v_fma_f32 v{p+1}, {neg(x.re[0], sg * x.re[1])}, v{tw+1}, v{p+1}")
        self.pool.release(x.pair)
        return C(p)

class FFTRegs:
    def __init__(self, base):
        b = base
        self.TW = b; b += 42
        self.W1 = b; self.R1 = b + 1; b += 2
        self.W2 = b; b += 8
        self.R2 = b; b += 8
        self.R3 = b; b += 8
        self.GX = b; self.GZ = b + 1; b += 2
        self.WV = b; b += 16
        self.T = b; b += 6
        self.POOL = b; b += 2 * 14
        self.end = b

def fft_setup(A, R, vt, L, s_tmp):
    T = R.T
    A(f"v_lshlrev_b32 v{R.W1}, 3, v{vt}\nv_add_u32 v{R.W1}, {L}, v{R.W1}")
    A(f"v_lshrrev_b32 v{T}, 5, v{vt}\nv_lshlrev_b32 v{T}, 11, v{T}\nv_add_u32 v{T}, {L}, v{T}")
    A(f"v_and_b32 v{T+1}, 31, v{vt}\nv_lshlrev_b32 v{T+1}, 3, v{T+1}\nv_add_u32 v{R.R1}, v{T}, v{T+1}")
    for p2 in range(8):
        A(f"v_xor_b32 v{R.W2+p2}, {32*p2}, v{R.R1}")
    A(f"v_bfe_u32 v{T+2}, v{vt}, 2, 3\nv_mul_u32_u24 v{T+3}, 288, v{T+2}\nv_and_b32 v{T+4}, 3, v{vt}\nv_lshlrev_b32 v{T+5}, 3, v{T+4}\nv_add3_u32 v{T+3}, v{T}, v{T+3}, v{T+5}")
    for c in range(8):
        A(f"v_xor_b32 v{R.R2+c}, {32*c}, v{T+3}")
    A(f"v_lshlrev_b32 v{T+3}, 8, v{T+2}\nv_add_u32 v{T+3}, v{T}, v{T+3}")
    A(f"v_lshlrev_b32 v{T+2}, 5, v{T+2}\nv_lshlrev_b32 v{T+5}, 6, v{T+4}\nv_xor_b32 v{T+2}, v{T+2}, v{T+5}\nv_add_u32 v{T+3}, v{T+3}, v{T+2}")
    for e0 in range(4):
        A(f"v_add_u32 v{T+5}, {e0}, v{T+4}\nv_and_b32 v{T+5}, 3, v{T+5}\nv_lshl_add_u32 v{R.R3+e0}, v{T+5}, 3, v{T+3}")
        A(f"v_xor_b32 v{R.R3+4+e0}, 32, v{R.R3+e0}")
    for lvl, (mask, n) in enumerate([(255, 2048), (31, 256), (3, 32)]):
        A(f"v_and_b32 v{T}, {mask}, v{vt}\nv_cvt_f32_u32 v{T}, v{T}")
        for p in range(1, 8):
            tw = R.TW + 14 * lvl + 2 * (p - 1)
            A(f"v_mul_f32 v{T+1}, {p/n}, v{T}\nv_cos_f32 v{tw}, v{T+1}\nv_sin_f32 v{tw+1}, v{T+1}")
    A(f"v_lshlrev_b32 v{R.GX}, 3, v{vt}")
    A(f"v_lshrrev_b32 v{T}, 4, v{vt}\nv_mul_u32_u24 v{T}, 18496, v{T}\nv_and_b32 v{T+1}, 15, v{vt}\nv_lshl_add_u32 v{R.GZ}, v{T+1}, 2, v{T}")

def fft_column_blocks(A_unused, R, s_rt2):
    blocks = []
    pool = Pool(R.POOL, 14)
    x = [C(pool.alloc()) for _ in range(8)]
    def blk(name):
        a = Asm(); blocks.append((name, a)); return a
    def wr(A, addr, off, v):
        assert v.re == (v.pair, 1) and v.im == (v.pair + 1, 1)
        A(f"ds_write_b64 v{addr}, v[{v.pair}:{v.pair+1}] offset:{off}"); pool.release(v.pair)
    def rd(A, addr, off):
        p = pool.alloc(); A(f"ds_read_b64 v[{p}:{p+1}], v{addr} offset:{off}"); return C(p)
    TW = lambda lvl, p: R.TW + 14 * lvl + 2 * (p - 1)
    A = blk("f1"); F = FFT(A, pool, s_rt2)
    y = F.dft8(x, -1)
    for p in range(8):
        v = y[p] if p == 0 else F.twid(y[p], TW(0, p), -1)
        wr(A, R.W1, 2048 * p, v)
    A("s_waitcnt lgkmcnt(0)")
    blk("BAR")
    A = blk("f2"); F = FFT(A, pool, s_rt2)
    x = [rd(A, R.R1, 256 * b) for b in range(8)]
    A("s_waitcnt lgkmcnt(0)")
    y = F.dft8(x, -1)
    for p in range(8):
        v = y[p] if p == 0 else F.twid(y[p], TW(1, p), -1)
        wr(A, R.W2 + p, 256 * p, v)
    A = blk("f3"); F = FFT(A, pool, s_rt2)
    x = [rd(A, R.R2 + c, 0) for c in range(8)]
    A("s_waitcnt lgkmcnt(0)")
    y = F.dft8(x, -1)
    for p in range(8):
        v = y[p] if p == 0 else F.twid(y[p], TW(2, p), -1)
        wr(A, R.R2 + p, 0, v)
    A = blk("f4"); F = FFT(A, pool, s_rt2)
    x = [rd(A, R.R3 + i, 0) for i in range(8)]
    A("s_waitcnt lgkmcnt(0)")
    A(";WAITW")
    for h in range(2):
        y = F.dft4(x[4*h:4*h+4], -1)
        z = []
        for u in range(4):
            i = 4 * h + u
            p = pool.alloc(); v = y[u]
            wr_, wi_ = R.WV + i, R.WV + 8 + i
            A(f"v_mul_f32 v{p}, v{v.pair}, v{wr_}\nv_mul_f32 v{p+1}, v{v.pair+1}, v{wr_}")
            A(f"v_fma_f32 v{p}, -v{v.pair+1}, v{wi_}, v{p}\nv_fma_f32 v{p+1}, v{v.pair}, v{wi_}, v{p+1}")
            pool.release(v.pair); z.append(C(p))
        y = F.dft4(z, +1)
        for e in range(4): wr(A, R.R3 + 4 * h + e, 0, y[e])
    A = blk("i3"); F = FFT(A, pool, s_rt2)
    x = [rd(A, R.R2 + p, 0) for p in range(8)]
    A("s_waitcnt lgkmcnt(0)")
    x = [x[0]] + [F.twid(x[p], TW(2, p), +1) for p in range(1, 8)]
    y = F.dft8(x, +1)
    for c in range(8): wr(A, R.R2 + c, 0, y[c])
    A = blk("i2"); F = FFT(A, pool, s_rt2)
    x = [rd(A, R.W2 + p, 256 * p) for p in range(8)]
    A("s_waitcnt lgkmcnt(0)")
    x = [x[0]] + [F.twid(x[p], TW(1, p), +1) for p in range(1, 8)]
    y = F.dft8(x, +1)
    for b in range(8): wr(A, R.R1, 256 * b, y[b])
    A("s_waitcnt lgkmcnt(0)")
    blk("BAR")
    A = blk("i1"); F = FFT(A, pool, s_rt2)
    x = [rd(A, R.W1, 2048 * p) for p in range(8)]
    A("s_waitcnt lgkmcnt(0)")
    x = [x[0]] + [F.twid(x[p], TW(0, p), +1) for p in range(1, 8)]
    y = F.dft8(x, +1)
    outs = []
    for a in range(8):
        A(f"v_cvt_pk_bf16_f32 v{y[a].pair}, v{y[a].pair}, v{y[a].pair+1}")
        outs.append(y[a].pair)
    return blocks, outs

def gen_fft_kernel(name):
    A = Asm()
    R = FFTRegs(2)
    A(f"s_cmp_ge_u32 s2, 289\ns_cbranch_scc1 L_fft_exit")
    A("s_load_dwordx2 s[4:5], s[0:1], 8\ns_load_dwordx2 s[8:9], s[0:1], 16\ns_load_dwordx2 s[16:17], s[0:1], 80")
    A(f"s_mov_b32 s6, {2048*578}\ns_mov_b32 s7, 0x00020000\ns_mov_b32 s10, {2048*578}\ns_mov_b32 s11, 0x00020000\ns_mov_b32 s18, {G.WS_SIZE}\ns_mov_b32 s19, 0x00020000")
    A(f"s_mov_b32 s20, {f32bits(0.7071067811865476)}")
    A(f"v_lshlrev_b32 v{R.GX}, 3, v0")
    A(f"s_lshl_b32 s21, s2, 14\ns_add_u32 s21, s21, {G.WS_X1}")
    A("s_waitcnt lgkmcnt(0)")
    for a in range(8):
        if a == 2 or a == 4 or a == 6: A("s_add_u32 s21, s21, 4096")
        p = R.POOL + 2 * a
        A(f"buffer_load_dwordx2 v[{p}:{p+1}], v{R.GX}, s[16:19], s21 offen offset:{2048*(a&1)}")
    T = R.T
    A(f"v_lshrrev_b32 v{T}, 5, v0\nv_bfe_u32 v{T+1}, v0, 2, 3\nv_lshl_add_u32 v{T}, v{T+1}, 3, v{T}\nv_and_b32 v{T+1}, 3, v0\nv_lshl_add_u32 v{T}, v{T+1}, 7, v{T}")
    A(f"v_mul_u32_u24 v1, 578, v{T}\ns_lshl_b32 s22, s2, 1")
    for h in range(2):
        for u3 in range(4):
            i = 4 * h + u3
            A(f"s_add_u32 s23, s22, {(64*h + 512*u3)*578}")
            A(f"buffer_load_ushort v{R.WV+i}, v1, s[4:7], s23 offen")
            A(f"buffer_load_ushort v{R.WV+8+i}, v1, s[8:11], s23 offen")
    fft_setup(A, R, 0, 0, 21)
    blocks, outs = fft_column_blocks(A, R, 20)
    A("s_waitcnt vmcnt(16)")
    for nm, b in blocks:
        if nm == "BAR": A("s_barrier")
        else:
            for line in b.L:
                if line.strip() == ";WAITW":
                    A("s_waitcnt vmcnt(0)")
                    for i in range(16): A(f"v_lshlrev_b32 v{R.WV+i}, 16, v{R.WV+i}")
                else: A.L.append(line)
    A(f"s_lshl_b32 s21, s2, 6\ns_add_u32 s21, s21, {G.WS_Z}")
    for a in range(8):
        A(f"buffer_store_dword v{outs[a]}, v{R.GZ}, s[16:19], s21 offen")
        if a < 7: A(f"s_add_u32 s21, s21, {16*18496}")
    A("L_fft_exit:\ns_endpgm")
    return kernel_header(name) + A.text() + kernel_desc(name, R.end, 32)

if __name__ == "__main__":
    src = f"; @launch grid=(289,1,1) block=(256,1,1) lds=16384\n" + '.amdgcn_target "amdgcn-amd-amdhsa--gfx950"\n' + gen_fft_kernel(NAME + "_kernel")
    open("fft_test.s", "w").write(src)
```

```python
from asmlib import *
import struct, math

WS_STATS = 0x0
WS_CS    = 0x10000
WS_HX    = 0x100000
WS_PART  = 0x1400000
WS_X1    = 0x2600000
WS_WT    = 0x2B00000
WS_Z     = 0x2E00000
WS_SIZE  = 0x10000000
SLOT = 18432
L_RING = 0
L_H = 73728
L_XR = L_H
L_F = 147456
L_TW = L_F
L_XK = L_F + 8192
L_ST = L_F + 11264
L_TS = L_F + 13312
LDS_BYTES = 163840

def f32bits(x):
    return struct.unpack("<I", struct.pack("<f", x))[0]

S_X, S_W1, S_W2, S_WS, S_MISC = 4, 8, 12, 16, 20
S_WAVE, S_R, S_FC, S_J, S_C = 24, 25, 26, 27, 28
S_B1P, S_DBGP = 30, 32

class Fifo:
    def __init__(self): self.q = []
    def push(self, tag): self.q.append(tag)
    def count_after(self, tag):
        idx = max(i for i, t in enumerate(self.q) if t == tag)
        return len(self.q) - 1 - idx

def mwave_loop(A, label, nfr, NB, PD, gemm, nloop):
    ACC = 64; PE = 208; PO = 224; BUF = 24; BE = 8; BO = 12; RAW = 16
    vA, vT, vX0, vX1 = 1, 2, 3, 4
    per = nfr // 2
    def frag_reads(fi):
        tau, t = divmod(fi, per)
        b = BUF + 4 * (fi % NB)
        if gemm == 1 and t == 9:
            return [f"ds_read_b128 v[{b}:{b+3}], v{vT} offset:{tau*1024}"]
        off = tau * 16 * 576 + t * 64
        return [f"ds_read_b64_tr_b16 v[{b}:{b+1}], v{vA} offset:{off}",
                f"ds_read_b64_tr_b16 v[{b+2}:{b+3}], v{vA} offset:{off+4*576}"]
    ops = []
    for i in range(nfr):
        ops.append(("waitlds", ("f", i)))
        ops.append(("mfma", i))
        nf = i + PD
        if nf == nfr:
            ops.append(("op", f"s_add_u32 s40, s40, {SLOT}\ns_cmp_eq_u32 s40, {4*SLOT}\ns_cselect_b32 s40, 0, s40\nv_add_u32 v{vA}, s40, v5"))
            if gemm == 1:
                ops.append(("op", f"s_add_u32 s41, s41, 2048\ns_and_b32 s41, s41, 8191\nv_add_u32 v{vT}, s41, v6"))
        for txt in frag_reads(nf % nfr):
            ops.append(("lds", ("f", nf % nfr), txt))
        if gemm == 1:
            if i == 0:
                pass
            if i in (0, 1):
                a = RAW + 4 * i
                ops.append(("op", f"v_perm_b32 v{BO+2*i}, v{a+1}, v{a}, s43\nv_perm_b32 v{BO+2*i+1}, v{a+3}, v{a+2}, s43"))
            if i == 6:
                ops.append(("op", f"s_add_u32 s44, s44, 8192\ns_and_b32 s44, s44, 32767\nv_add_u32 v{vX0}, s44, v7\nv_xor_b32 v{vX1}, 32, v{vX0}"))
            if i == 7:
                ops.append(("lds", ("x",), f"ds_read_b128 v[{RAW}:{RAW+3}], v{vX0}"))
                ops.append(("lds", ("x",), f"ds_read_b128 v[{RAW+4}:{RAW+7}], v{vX1}"))
            if i == 14:
                ops.append(("waitlds", ("x",)))
            if i in (14, 15):
                a = RAW + 4 * (i - 14)
                ops.append(("op", f"v_perm_b32 v{BE+2*(i-14)}, v{a+1}, v{a}, s42\nv_perm_b32 v{BE+2*(i-14)+1}, v{a+3}, v{a+2}, s42"))
        else:
            if i == 0:
                ops.append(("lds", ("bo",), f"ds_read_b128 v[{BO}:{BO+3}], v{vX0} offset:4096"))
            if i == 9:
                ops.append(("op", f"s_add_u32 s44, s44, 8192\ns_cmp_eq_u32 s44, 73728\ns_cselect_b32 s44, 0, s44\nv_add_u32 v{vX0}, s44, v7"))
                ops.append(("lds", ("be",), f"ds_read_b128 v[{BE}:{BE+3}], v{vX0}"))
            if i == 8:
                ops.append(("waitlds", ("bo",)))
            if i == 17:
                ops.append(("waitlds", ("be",)))
    fifo = Fifo()
    counts = {}
    for it in range(2):
        for k, op in enumerate(ops):
            if op[0] == "lds": fifo.push(op[1])
            elif op[0] == "waitlds" and it == 1:
                counts[k] = fifo.count_after(op[1])
    A(f"{label}:")
    last_wait = None
    for k, op in enumerate(ops):
        if op[0] == "waitlds":
            c = counts[k]
            c = min(c, 15)
            A(f"s_waitcnt lgkmcnt({c})")
        elif op[0] == "mfma":
            i = op[1]; tau, t = divmod(i, per)
            b = BUF + 4 * (i % NB)
            bb = BE if tau == 0 else BO
            if gemm == 1 and t == 9:
                acc = PE if tau == 0 else PO
            else:
                acc = ACC + 16 * t
            A(f"v_mfma_f32_32x32x16_bf16 v[{acc}:{acc+15}], v[{b}:{b+3}], v[{bb}:{bb+3}], v[{acc}:{acc+15}]")
        elif op[0] == "lds": A(op[2])
        else: A(op[1])
    if gemm == 2:
        A(f"s_cmp_lg_u32 s45, {nloop-2}\ns_cbranch_scc1 {label}_nw\ns_waitcnt vmcnt(0)\n{label}_nw:")
    A("s_barrier")
    A(f"s_sub_u32 s45, s45, 1\ns_cmp_lg_u32 s45, 0\ns_cbranch_scc1 {label}")
    return frag_reads

def gen_mwave(A, stamp=False):
    ACC = 64; PE = 208; PO = 224; BUF = 24; BE = 8; BO = 12; RAW = 16
    vA, vT, vX0, vX1 = 1, 2, 3, 4
    PD = 6
    A("L_mwave:")
    A("v_and_b32 v240, 63, v0")
    A("v_lshrrev_b32 v241, 5, v240\nv_lshlrev_b32 v242, 3, v241\nv_bfe_u32 v243, v240, 2, 2\nv_add_u32 v242, v242, v243\nv_mul_u32_u24 v242, 576, v242")
    A("v_bfe_u32 v243, v240, 4, 1\nv_lshlrev_b32 v243, 5, v243\nv_and_b32 v244, 3, v240\nv_lshlrev_b32 v244, 3, v244\nv_add3_u32 v5, v242, v243, v244")
    A(f"v_lshlrev_b32 v6, 4, v240\nv_add_u32 v6, {L_TW}, v6")
    A("v_and_b32 v242, 31, v240\nv_bfe_u32 v243, v240, 2, 2\nv_xor_b32 v243, v243, v241\nv_lshlrev_b32 v243, 4, v243\nv_lshlrev_b32 v242, 6, v242")
    A(f"s_lshl_b32 s46, s{S_WAVE}, 11\ns_add_u32 s46, s46, {L_XR}\nv_add3_u32 v7, v242, v243, s46")
    A("s_mov_b32 s42, 0x05040100\ns_mov_b32 s43, 0x07060302")
    A("s_mov_b32 s40, 0\ns_mov_b32 s41, 0\ns_mov_b32 s44, 0\ns_mov_b32 s45, 18")
    A(f"v_mov_b32 v{vA}, v5\nv_mov_b32 v{vT}, v6\nv_mov_b32 v{vX0}, v7\nv_xor_b32 v{vX1}, 32, v7")
    for i in range(ACC, PO + 16):
        A(f"v_mov_b32 v{i}, 0")
    A("s_barrier")
    if stamp: A("s_memtime s[60:61]")
    A(f"ds_read_b128 v[{RAW}:{RAW+3}], v{vX0}\nds_read_b128 v[{RAW+4}:{RAW+7}], v{vX1}")
    tmp = Asm()
    fr = mwave_loop(tmp, "L_g1", 20, 10, PD, 1, 18)
    A("s_waitcnt lgkmcnt(0)")
    for i in range(2):
        a = RAW + 4 * i
        A(f"v_perm_b32 v{BE+2*i}, v{a+1}, v{a}, s42\nv_perm_b32 v{BE+2*i+1}, v{a+3}, v{a+2}, s42")
    for fi in range(PD):
        for t in fr(fi): A(t)
    A.L += tmp.L
    if stamp: A("s_memtime s[62:63]")
    A(f"v_and_b32 v242, 31, v240\nv_lshlrev_b32 v243, 4, v242\ns_lshl_b32 s46, s{S_WAVE}, 9\ns_add_u32 s46, s46, {L_ST}\nv_add_u32 v243, s46, v243")
    A(f"ds_read_b128 v[244:247], v243")
    A(f"v_lshlrev_b32 v243, 3, v242\nv_add_u32 v243, {L_XK}, v243")
    xb = [48, 52, 56, 60]
    def xk_read(t):
        b = xb[t % 4]
        A(f"ds_read_b64 v[{b}:{b+1}], v243 offset:{t*256}")
    for t in range(4): xk_read(t)
    A("s_waitcnt lgkmcnt(4)")
    A(f"v_cmp_gt_u32 vcc, 32, v240\nv_mov_b32 v{RAW+2}, 0\nv_mov_b32 v{RAW+3}, 0\nv_cndmask_b32 v{RAW}, 0, v244, vcc\nv_cndmask_b32 v{RAW+1}, 0, v245, vcc\ns_nop 1")
    for t in range(11):
        rem = min(3, 10 - t)
        A(f"s_waitcnt lgkmcnt({rem})")
        acc = ACC + 16 * t
        b = xb[t % 4]
        A(f"v_mfma_f32_32x32x16_bf16 v[{acc}:{acc+15}], v[{b}:{b+3}], v[{RAW}:{RAW+3}], v[{acc}:{acc+15}]")
        if t + 4 < 11: xk_read(t + 4)
    A(f"s_lshl_b32 s46, s{S_WAVE}, 10\nv_lshlrev_b32 v242, 4, v240\nv_add_u32 v242, s46, v242")
    A(f"v_add_u32 v7, {L_H}, v242")
    A(f"v_add_u32 v243, {L_H+36864}, v242")
    A(f"s_mul_i32 s47, s2, 73728\ns_add_u32 s47, s47, {WS_HX}")
    for t in range(9):
        acc = ACC + 16 * t
        o = 248
        if t == 0: A("s_nop 7")
        for x in range(16):
            A(f"v_mul_f32_e64 v{acc+x}, v{acc+x}, |v{acc+x}|")
        for x in range(8):
            A(f"v_cvt_pk_bf16_f32 v{o+x}, v{acc+2*x}, v{acc+2*x+1}")
        for x in range(8):
            A(f"v_pk_max_i16 v{o+x}, v{o+x}, 0")
        for h in range(2):
            kap = 2 * t + h
            if kap < 9:
                A(f"ds_write_b128 v7, v[{o+4*h}:{o+4*h+3}] offset:{kap*4096}")
            else:
                A(f"ds_write_b128 v243, v[{o+4*h}:{o+4*h+3}] offset:{(kap-9)*4096}")
            A(f"buffer_store_dwordx4 v[{o+4*h}:{o+4*h+3}], v242, s[{S_WS}:{S_WS+3}], s47 offen sc0 sc1")
            A(f"s_add_u32 s47, s47, 4096")
        for x in range(16):
            A(f"v_mov_b32 v{acc+x}, 0")
    A(f"s_cmp_ge_u32 s{S_FC}, 9\ns_cbranch_scc1 L_nox1")
    A(f"s_lshl_b32 s46, s{S_R}, 7\ns_lshl_b32 s47, s{S_WAVE}, 5\ns_add_u32 s46, s46, s47\ns_lshl_b32 s46, s46, 3")
    A(f"v_and_b32 v243, 31, v240\nv_lshlrev_b32 v243, 3, v243\nv_add_u32 v243, s46, v243")
    A(f"v_lshlrev_b32 v244, 16, v241")
    A(f"s_lshl_b32 s47, s{S_FC}, 18\ns_add_u32 s48, s47, {WS_X1 + 16384}")
    A(f"v_add_u32 v245, v243, v244")
    A(f"v_sub_u32 v243, v243, v244\nv_add_u32 v243, {4*16384}, v243")
    A(f"s_sub_u32 s49, {WS_X1 + (288-1-4)*16384}, s47")
    for rr in range(8):
        off = 8 * (rr >> 2) + (rr & 3)
        e, o_ = PE + rr, PO + rr
        A(f"v_add_f32 v248, v{e}, v{o_}\nv_add_f32 v249, v{e+8}, v{o_+8}\nv_sub_f32 v250, v{e}, v{o_}\nv_sub_f32 v251, v{o_+8}, v{e+8}")
        A(f"v_mul_f32 v252, v246, v248\nv_mul_f32 v253, v246, v249\nv_mul_f32 v254, v246, v250\nv_mul_f32 v255, v246, v251")
        A(f"s_add_u32 s50, s48, {off*16384}\ns_sub_u32 s51, s49, {off*16384}")
        A(f"buffer_store_dwordx2 v[252:253], v245, s[{S_WS}:{S_WS+3}], s50 offen sc0 sc1")
        A(f"buffer_store_dwordx2 v[254:255], v243, s[{S_WS}:{S_WS+3}], s51 offen sc0 sc1")
    A("L_nox1:")
    A("s_mov_b32 s44, 0\ns_mov_b32 s45, 18")
    A(f"v_mov_b32 v{vX0}, v7")
    A("s_waitcnt lgkmcnt(0)")
    A(f"ds_read_b128 v[{BE}:{BE+3}], v{vX0}")
    A("s_waitcnt lgkmcnt(0)")
    if stamp: A("s_memtime s[64:65]")
    mwave_loop(A, "L_g2", 18, 9, PD, 2, 18)
    if stamp: A("s_memtime s[66:67]")
    A(f"s_mul_i32 s47, s2, 73728\ns_add_u32 s47, s47, {WS_PART}")
    A("s_nop 7")
    for t in range(9):
        acc = ACC + 16 * t
        o = 24 + 8 * (t % 4)
        for x in range(8):
            A(f"v_cvt_pk_bf16_f32 v{o+x}, v{acc+2*x}, v{acc+2*x+1}")
        for h in range(2):
            A(f"buffer_store_dwordx4 v[{o+4*h}:{o+4*h+3}], v242, s[{S_WS}:{S_WS+3}], s47 offen")
            A(f"s_add_u32 s47, s47, 4096")
    if stamp:
        A("s_waitcnt vmcnt(0)\ns_memtime s[68:69]\ns_waitcnt lgkmcnt(0)")
        for i, s in enumerate([60, 62, 64, 66, 68]):
            A(f"s_sub_u32 s{s}, s{s}, s58\nv_mov_b32 v{24+i}, s{s}")
        A(f"s_lshl_b32 s46, s2, 7\ns_lshl_b32 s47, s{S_WAVE}, 5\ns_add_u32 s46, s46, s47\ns_add_u32 s46, s46, 0x80000\nv_mov_b32 v30, 0")
        A(f"buffer_store_dwordx4 v[24:27], v30, s[{S_WS}:{S_WS+3}], s46 offen\nbuffer_store_dword v28, v30, s[{S_WS}:{S_WS+3}], s46 offen offset:16")
    A("s_endpgm")

def div36(A, dst_q, dst_r, src, tmp):
    A(f"v_cvt_f32_u32 v{tmp}, v{src}\nv_add_f32 v{tmp}, 0.5, v{tmp}\nv_mul_f32 v{tmp}, {1.0/36}, v{tmp}\nv_cvt_u32_f32 v{dst_q}, v{tmp}")
    A(f"v_mul_u32_u24 v{tmp}, 36, v{dst_q}\nv_sub_u32 v{dst_r}, v{src}, v{tmp}")

def gen_helper(A, stamp=False):
    VL = 1
    VW = 10
    VW2 = 15
    VX = 20
    VARG = 24
    VSTEP = 28; VTS = 29; VTA = 30
    T = 32
    S_HW = 40
    vm = Fifo()
    A("L_helper:")
    A(f"s_sub_u32 s{S_HW}, s{S_WAVE}, 4")
    A(f"v_and_b32 v{VL}, 63, v0")
    for i in range(5):
        if i < 4:
            A(f"s_lshl_b32 s41, s{S_HW}, 8\ns_add_u32 s41, s41, {64*i}")
        else:
            A(f"s_lshl_b32 s41, s{S_HW}, 5\ns_add_u32 s41, s41, 1024")
        A(f"v_add_u32 v{T}, s41, v{VL}")
        div36(A, T+1, T+2, T, T+3)
        A(f"v_bfe_u32 v{T+3}, v{T+1}, 2, 1\nv_lshlrev_b32 v{T+3}, 4, v{T+3}")
        A(f"v_and_b32 v{T+4}, 8, v{T+1}")
        A(f"v_and_b32 v{T+5}, 3, v{T+1}\nv_lshlrev_b32 v{T+5}, 1, v{T+5}")
        A(f"v_lshrrev_b32 v{T+6}, 4, v{T+1}")
        A(f"v_add3_u32 v{T+3}, v{T+3}, v{T+4}, v{T+5}\nv_add_u32 v{T+3}, v{T+3}, v{T+6}")
        A(f"v_mul_u32_u24 v{T+3}, 9216, v{T+3}\nv_lshlrev_b32 v{T+4}, 4, v{T+2}\nv_add_u32 v{VW+i}, v{T+3}, v{T+4}")
        if 0 < i < 4: A(f"v_subrev_u32 v{VW+i}, {1024*i}, v{VW+i}")
        A(f"v_and_b32 v{T+3}, 19, v{T+1}")
        A(f"v_bfe_u32 v{T+4}, v{T+1}, 2, 1\nv_lshlrev_b32 v{T+4}, 3, v{T+4}")
        A(f"v_bfe_u32 v{T+5}, v{T+1}, 3, 1\nv_lshlrev_b32 v{T+5}, 2, v{T+5}")
        A(f"v_add3_u32 v{T+3}, v{T+3}, v{T+4}, v{T+5}\nv_mul_u32_u24 v{T+3}, 1152, v{T+3}")
        A(f"v_lshlrev_b32 v{T+4}, 4, v{T+2}\nv_add3_u32 v{T+3}, v{T+3}, v{T+4}, s42")
        A(f"v_cmp_le_u32 vcc, s43, v{T+2}\nv_mov_b32 v{T+5}, 0x120\ns_nop 0\nv_cndmask_b32 v{T+4}, 0, v{T+5}, vcc\nv_add_u32 v{T+3}, v{T+3}, v{T+4}")
        A(f"v_cmp_le_u32 vcc, s44, v{T+2}\ns_nop 1\nv_cndmask_b32 v{T+4}, 0, v{T+5}, vcc\nv_add_u32 v{VW2+i}, v{T+3}, v{T+4}")
        if 0 < i < 4: A(f"v_subrev_u32 v{VW2+i}, {1024*i}, v{VW2+i}")
    A(f"v_lshrrev_b32 v{T}, 2, v{VL}\ns_lshl_b32 s41, s{S_HW}, 5\nv_add_u32 v{T}, s41, v{T}\nv_mul_u32_u24 v{T}, 1152, v{T}")
    A(f"v_bfe_u32 v{T+1}, v{VL}, 4, 2\nv_and_b32 v{T+2}, 3, v{VL}\nv_xor_b32 v{T+1}, v{T+1}, v{T+2}\nv_lshlrev_b32 v{T+1}, 4, v{T+1}\nv_add_u32 v{VX}, v{T}, v{T+1}")
    A(f"s_mul_i32 s45, s{S_FC}, 576")
    A(f"s_mul_i32 s46, s{S_R}, {128*1152}")
    A(f"s_lshl_b32 s47, s{S_HW}, 12")
    A(f"s_lshl_b32 s48, s{S_HW}, 9\ns_add_u32 s48, s48, 16384")
    A(f"s_lshl_b32 s49, s{S_HW}, 11\ns_add_u32 s49, s49, {L_XR}")
    A(f"s_mul_i32 s50, s{S_FC}, {288*1152}\ns_xor_b32 s51, s{S_FC}, 1\ns_mul_i32 s51, s51, {288*1152}")
    def dma_stage(S):
        slot = (S % 4) * SLOT
        if S < 18:
            A(f"s_add_u32 s52, s45, {S*32*9216}")
            srdw, vw = S_W1, VW
        else:
            s2 = S - 18
            if s2 < 9: A(f"s_add_u32 s52, s50, {s2*32*1152}")
            else: A(f"s_add_u32 s52, s51, {(s2-9)*32*1152}")
            srdw, vw = S_W2, VW2
        A(f"s_add_u32 m0, s47, {slot}\ns_nop 0")
        for i in range(4):
            A(f"buffer_load_dwordx4 v{vw+i}, s[{srdw}:{srdw+3}], s52 offen offset:{1024*i} lds"); vm.push(("st", S))
        A(f"s_add_u32 m0, s48, {slot}\ns_mov_b64 exec, 0xffffffff")
        A(f"buffer_load_dwordx4 v{vw+4}, s[{srdw}:{srdw+3}], s52 offen lds"); vm.push(("st", S))
        A("s_mov_b64 exec, -1")
        if S < 18:
            A(f"s_add_u32 m0, s49, {(S%4)*8192}\ns_add_u32 s52, s46, {S*64}\ns_add_u32 s53, s52, {16*1152-1024}")
            A(f"buffer_load_dwordx4 v{VX}, s[{S_X}:{S_X+3}], s52 offen lds"); vm.push(("st", S))
            A(f"buffer_load_dwordx4 v{VX}, s[{S_X}:{S_X+3}], s53 offen offset:1024 lds"); vm.push(("st", S))
    for S in range(3): dma_stage(S)
    A(f"s_cmp_lt_u32 s{S_FC}, 9\ns_cselect_b32 s41, s{S_FC}, 0\ns_lshl_b32 s41, s41, 4\ns_add_u32 s41, s41, 1")
    A(f"v_and_b32 v{T}, 15, v{VL}\nv_add_u32 v{T}, s41, v{T}")
    A(f"s_and_b32 s41, s{S_HW}, 1\ns_lshl_b32 s41, s41, 4\ns_lshr_b32 s52, s{S_HW}, 1\ns_add_u32 s41, s41, s52")
    A(f"v_lshrrev_b32 v{T+1}, 5, v{VL}\nv_lshlrev_b32 v{T+1}, 3, v{T+1}\nv_add_u32 v{T+1}, s41, v{T+1}")
    A(f"v_bfe_u32 v{T+2}, v{VL}, 4, 1\nv_cvt_f32_u32 v{T+2}, v{T+2}\nv_mul_f32 v{T+2}, 0.25, v{T+2}")
    A(f"s_mov_b32 s41, {f32bits(1.0/576)}")
    for ii in range(4):
        A(f"v_add_u32 v{T+3}, {2*ii}, v{T+1}\nv_mul_u32_u24 v{T+3}, v{T}, v{T+3}\nv_cvt_f32_u32 v{T+3}, v{T+3}\nv_fma_f32 v{T+3}, v{T+3}, s41, v{T+2}\nv_fract_f32 v{VARG+ii}, v{T+3}")
    A(f"v_lshlrev_b32 v{T+3}, 5, v{T}\nv_cvt_f32_u32 v{T+3}, v{T+3}\nv_mul_f32 v{T+3}, s41, v{T+3}\nv_fract_f32 v{VSTEP}, v{T+3}")
    A(f"v_mov_b32 v{VTS}, 0")
    A(f"s_lshr_b32 s41, s{S_HW}, 1\ns_lshl_b32 s41, s41, 10\ns_and_b32 s52, s{S_HW}, 1\ns_lshl_b32 s52, s52, 3\ns_add_u32 s41, s41, s52\ns_add_u32 s41, s41, {L_TW}")
    A(f"v_lshlrev_b32 v{VTA}, 4, v{VL}\nv_add_u32 v{VTA}, s41, v{VTA}")
    def twiddle(S):
        for ii in range(4): A(f"v_cos_f32 v{T+ii}, v{VARG+ii}")
        for ii in range(4): A(f"v_add_f32 v{VARG+ii}, v{VARG+ii}, v{VSTEP}")
        A(f"v_cvt_pk_bf16_f32 v{T+4}, v{T}, v{T+1}\nv_cvt_pk_bf16_f32 v{T+5}, v{T+2}, v{T+3}")
        for ii in range(4): A(f"v_fract_f32 v{VARG+ii}, v{VARG+ii}")
        A(f"ds_write_b64 v{VTA}, v[{T+4}:{T+5}] offset:{(S%4)*2048}")
        A(f"v_lshlrev_b32 v{T}, 16, v{T+4}\nv_and_b32 v{T+1}, 0xffff0000, v{T+4}\nv_lshlrev_b32 v{T+2}, 16, v{T+5}\nv_and_b32 v{T+3}, 0xffff0000, v{T+5}")
        A(f"v_add_f32 v{T}, v{T}, v{T+1}\nv_add_f32 v{T+2}, v{T+2}, v{T+3}\nv_add_f32 v{VTS}, v{VTS}, v{T}\nv_add_f32 v{VTS}, v{VTS}, v{T+2}")
    twiddle(0); twiddle(1)
    A(f"s_waitcnt vmcnt({vm.count_after(('st', 1))}) lgkmcnt(0)")
    A("s_barrier")
    def split3(A, src, d0, d1, t):
        A(f"v_cvt_pk_bf16_f32 v{t}, v{src}, v{src}\nv_and_b32 v{t}, 0xffff0000, v{t}\nv_sub_f32 v{t+1}, v{src}, v{t}")
        A(f"v_cvt_pk_bf16_f32 v{t+2}, v{t+1}, v{t+1}\nv_and_b32 v{t+2}, 0xffff0000, v{t+2}\nv_sub_f32 v{t+1}, v{t+1}, v{t+2}")
        A(f"v_lshrrev_b32 v{t}, 16, v{t}\nv_or_b32 v{d0}, v{t}, v{t+2}")
        A(f"v_cvt_pk_bf16_f32 v{d1}, v{t+1}, v{t+1}\nv_and_b32 v{d1}, 0xffff, v{d1}")
    for s in range(36):
        if s + 3 < 36: dma_stage(s + 3)
        if s + 2 < 18: twiddle(s + 2)
        if s == 14:
            A(f"v_and_b32 v{T+8}, 255, v0")
            A(f"s_mul_i32 s41, s{S_FC}, 1152\ns_add_u32 s41, s41, {WS_CS}")
            A(f"v_lshlrev_b32 v{T+9}, 2, v{T+8}")
            for pp in range(16):
                A(f"buffer_load_dword v{64+2*pp}, v{T+9}, s[{S_WS}:{S_WS+3}], s41 offen"); vm.push("xk")
                A(f"buffer_load_dword v{65+2*pp}, v{T+9}, s[{S_WS}:{S_WS+3}], s41 offen offset:1024"); vm.push("xk")
                A("s_add_u32 s41, s41, 18432")
            A(f"s_mul_i32 s41, s{S_FC}, 576\nv_lshlrev_b32 v{T+9}, 1, v{T+8}")
            A(f"buffer_load_ushort v{T+12}, v{T+9}, s[{S_MISC}:{S_MISC+3}], s41 offen"); vm.push("xk")
            A(f"buffer_load_ushort v{T+13}, v{T+9}, s[{S_MISC}:{S_MISC+3}], s41 offen offset:512"); vm.push("xk")
            A(f"s_lshl_b32 s41, s{S_R}, 11\ns_add_u32 s41, s41, {WS_STATS}\nv_and_b32 v{T+9}, 127, v{T+8}\nv_lshlrev_b32 v{T+9}, 4, v{T+9}")
            A(f"buffer_load_dwordx4 v[{T+16}:{T+19}], v{T+9}, s[{S_WS}:{S_WS+3}], s41 offen"); vm.push("xk")
        if s == 16:
            A(f"s_lshl_b32 s41, s{S_HW}, 8\ns_add_u32 s41, s41, {L_TS}\nv_lshlrev_b32 v{T}, 2, v{VL}\nv_add_u32 v{T}, s41, v{T}\nds_write_b32 v{T}, v{VTS}")
            A(f"s_waitcnt vmcnt({vm.count_after('xk')})")
            A(f"v_add_u32 v{T+9}, {L_ST}, v{T+9}\nds_write_b128 v{T+9}, v[{T+16}:{T+19}]")
            A(f"v_add_f32 v{T+10}, v64, v66\nv_add_f32 v{T+11}, v65, v67")
            for pp in range(2, 16):
                A(f"v_add_f32 v{T+10}, v{T+10}, v{64+2*pp}\nv_add_f32 v{T+11}, v{T+11}, v{65+2*pp}")
            for h in range(2):
                split3(A, T+10+h, T+20, T+21, T)
                A(f"v_lshl_or_b32 v{T+21}, v{T+12+h}, 16, v{T+21}")
                A(f"v_lshlrev_b32 v{T}, 3, v{T+8}\nv_add_u32 v{T}, {L_XK + 2048*h}, v{T}")
                if h == 1: A(f"v_cmp_gt_u32 vcc, 32, v{T+8}\ns_and_saveexec_b64 s[54:55], vcc")
                A(f"ds_write_b64 v{T}, v[{T+20}:{T+21}]")
                if h == 1: A("s_mov_b64 exec, s[54:55]")
        if s == 17:
            A(f"v_lshrrev_b32 v{T}, 5, v{VL}\nv_lshlrev_b32 v{T}, 9, v{T}\nv_and_b32 v{T+1}, 31, v{VL}\nv_lshlrev_b32 v{T+1}, 2, v{T+1}\nv_add3_u32 v{T}, v{T}, v{T+1}, s56")
            A.L.insert(len(A.L) - 5, f"  s_mov_b32 s56, {L_TS}")
            A(f"ds_read2_b32 v[{T+4}:{T+5}], v{T} offset0:0 offset1:32\nds_read2_b32 v[{T+6}:{T+7}], v{T} offset0:64 offset1:96\ns_waitcnt lgkmcnt(0)")
            A(f"v_add_f32 v{T+4}, v{T+4}, v{T+5}\nv_add_f32 v{T+6}, v{T+6}, v{T+7}\nv_add_f32 v{T+10}, v{T+4}, v{T+6}")
            split3(A, T+10, T+20, T+21, T)
            A(f"v_lshlrev_b32 v{T}, 3, v{VL}\nv_add_u32 v{T}, {L_XK + 288*8}, v{T}\nds_write_b64 v{T}, v[{T+20}:{T+21}]")
        if s == 21:
            A(f"s_cmp_lg_u32 s{S_HW}, 0\ns_cbranch_scc1 L_noflag")
            A(f"v_mov_b32 v{T}, s2\nv_mov_b32 v{T+1}, 1\ns_mov_b64 exec, 1")
            A(f"global_store_byte v{T}, v{T+1}, s[{S_DBGP}:{S_DBGP+1}] sc0 sc1")
            A("s_mov_b64 exec, -1\ns_waitcnt vmcnt(0)\nL_noflag:")
        if s == 24:
            A(f"s_xor_b32 s41, s2, 8\nv_mov_b32 v{T}, s41\ns_mov_b32 s57, 0")
            A("L_poll:")
            A(f"global_load_ubyte v{T+1}, v{T}, s[{S_DBGP}:{S_DBGP+1}] sc0 sc1\ns_waitcnt vmcnt(0)")
            A(f"v_readfirstlane_b32 s41, v{T+1}\ns_add_u32 s57, s57, 1\ns_cmp_gt_u32 s57, 20000\ns_cbranch_scc1 L_polld")
            A("s_cmp_lg_u32 s41, 0\ns_cbranch_scc1 L_polld\ns_sleep 2\ns_branch L_poll\nL_polld:")
            A(f"s_xor_b32 s41, s2, 8\ns_mul_i32 s57, s41, 73728\ns_add_u32 s57, s57, {WS_HX}\ns_lshl_b32 s41, s{S_HW}, 11\ns_add_u32 s57, s57, s41")
            A(f"s_add_u32 s56, s41, {L_H}\nv_lshlrev_b32 v{VX}, 4, v{VL}")
        if 24 <= s <= 32:
            t = s - 24
            A(f"s_add_u32 m0, s56, {t*8192}\ns_add_u32 s52, s57, {t*8192}")
            A(f"buffer_load_dwordx4 v{VX}, s[{S_WS}:{S_WS+3}], s52 offen sc0 sc1 lds"); vm.push(("st", s + 3))
            A(f"buffer_load_dwordx4 v{VX}, s[{S_WS}:{S_WS+3}], s52 offen offset:1024 sc0 sc1 lds"); vm.push(("st", s + 3))
        if stamp: A(f"s_memtime s[60:61]\ns_waitcnt lgkmcnt(0)\ns_sub_u32 s60, s60, s58\nv_writelane_b32 v100, s60, {s}")
        if s + 2 < 36:
            A(f"s_waitcnt vmcnt({vm.count_after(('st', s + 2))}) lgkmcnt(0)")
        if stamp: A(f"s_memtime s[60:61]\ns_waitcnt lgkmcnt(0)\ns_sub_u32 s60, s60, s58\nv_writelane_b32 v101, s60, {s}")
        A("s_barrier")
        if stamp: A(f"s_memtime s[60:61]\ns_waitcnt lgkmcnt(0)\ns_sub_u32 s60, s60, s58\nv_writelane_b32 v102, s60, {s}")
    if stamp:
        A(f"s_memrealtime s[62:63]\ns_waitcnt lgkmcnt(0)\ns_sub_u32 s62, s62, s64\nv_writelane_b32 v102, s62, 40")
        A(f"s_lshl_b32 s46, s2, 12\ns_lshl_b32 s47, s{S_HW}, 10\ns_add_u32 s46, s46, s47\ns_add_u32 s46, s46, 0x3000000\nv_lshlrev_b32 v30, 2, v{VL}")
        for i in range(3):
            A(f"buffer_store_dword v{100+i}, v30, s[{S_WS}:{S_WS+3}], s46 offen offset:{256*i}")
    A("s_endpgm")

def gen_main_kernel(name, stamp=False):
    A = Asm()
    if stamp: A("s_memtime s[58:59]\ns_memrealtime s[64:65]")
    A("s_cmp_ge_u32 s2, 256\ns_cbranch_scc1 L_exit")
    A("s_load_dwordx2 s[4:5], s[0:1], 0\ns_load_dwordx2 s[8:9], s[0:1], 32\ns_load_dwordx2 s[12:13], s[0:1], 48\ns_load_dwordx2 s[16:17], s[0:1], 80")
    A(f"s_load_dwordx2 s[20:21], s[0:1], 40\ns_load_dwordx2 s[{S_DBGP}:{S_DBGP+1}], s[0:1], 72")
    A(f"v_lshrrev_b32 v1, 6, v0\ns_nop 0\nv_readfirstlane_b32 s{S_WAVE}, v1")
    A(f"s_mov_b32 s6, 2359296\ns_mov_b32 s7, 0x00020000\ns_mov_b32 s10, 5308416\ns_mov_b32 s11, 0x00020000\ns_mov_b32 s14, 5308416\ns_mov_b32 s15, 0x00020000")
    A(f"s_mov_b32 s18, {WS_SIZE}\ns_mov_b32 s19, 0x00020000\ns_mov_b32 s22, 9216\ns_mov_b32 s23, 0x00020000")
    A(f"s_and_b32 s40, s2, 1\ns_lshl_b32 s40, s40, 3\ns_lshr_b32 s41, s2, 5\ns_add_u32 s{S_R}, s40, s41")
    A(f"s_bfe_u32 s40, s2, 0x20001\ns_lshl_b32 s40, s40, 2\ns_bfe_u32 s41, s2, 0x20003\ns_add_u32 s{S_FC}, s40, s41")
    A(f"s_lshr_b32 s{S_J}, s{S_FC}, 1\ns_and_b32 s{S_C}, s{S_FC}, 1")
    A(f"s_cmp_eq_u32 s{S_C}, 0\ns_cselect_b32 s42, 0, 144\ns_cselect_b32 s43, 9, 18\ns_cselect_b32 s44, 27, 99")
    A("s_waitcnt lgkmcnt(0)")
    A(f"s_cmp_ge_u32 s{S_WAVE}, 4\ns_cbranch_scc1 L_helper")
    gen_mwave(A, stamp)
    gen_helper(A, stamp)
    A("L_exit:\ns_endpgm")
    return kernel_header(name) + A.text() + kernel_desc(name, 256, 96)

if __name__ == "__main__":
    src = f"; @launch grid=(256,1,1) block=(512,1,1) lds={LDS_BYTES}\n" + '.amdgcn_target "amdgcn-amd-amdhsa--gfx950"\n' + gen_main_kernel(NAME + "_kernel", stamp=True)
    open("main_test.s", "w").write(src)
```

```python
from asmlib import *
import gen_main as G, gen_fft as F, gen_aux as X
hdr = open("cdna_kernels/" + NAME + ".s.ref").read().split("; Override")[0]
src = hdr
src += f"; @launch kernel=prep_kernel grid=(256,1,1) block=(256,1,1) lds=0\n"
src += f"; @launch kernel=main_kernel grid=(256,1,1) block=(512,1,1) lds={G.LDS_BYTES}\n"
src += f"; @launch kernel=fft_kernel grid=(289,1,1) block=(256,1,1) lds=16384\n"
src += f"; @launch kernel=final_kernel grid=(256,1,1) block=(256,1,1) lds={X.F_LDS}\n"
src += '.amdgcn_target "amdgcn-amd-amdhsa--gfx950"\n'
src += X.gen_prep_kernel("prep_kernel") + G.gen_main_kernel("main_kernel") + F.gen_fft_kernel("fft_kernel") + X.gen_final_kernel("final_kernel")
open("v1.s", "w").write(src)
```

```python
from asmlib import *
import struct, math
def f32bits(x): return struct.unpack("<I", struct.pack("<f", x))[0]
WS_STATS = 0x0
WS_TS    = 0x8000
WS_E     = 0x9000
WS_CS    = 0x10000
WS_FLAG  = 0x60000
WS_DBG   = 0x80000
WS_PART  = 0x1400000
WS_X1    = 0x2600000
WS_WT    = 0x2B00000
WS_Z     = 0x2E00000
WS_SIZE  = 0x10000000
NS = 12; SUB = 3072; RHALF = NS * SUB
L_H = 73728
L_F = 147456
L_XK = L_F
L_ST = L_F + 4608
LDS_BYTES = 163840
def tw_addr(phi): return 18432 + 1024 * phi if phi < 18 else 55296 + 1024 * (phi - 18)
S_X, S_W1, S_W2, S_WS, S_MISC = 4, 8, 12, 16, 20
S_WAVE, S_RB, S_J, S_K0, S_NONCE = 24, 25, 26, 27, 29
CODE_PF = 3

class Fifo:
    def __init__(self): self.q = []
    def push(self, tag): self.q.append(tag)
    def count_after(self, tag):
        idx = max(i for i, t in enumerate(self.q) if t == tag)
        return len(self.q) - 1 - idx

ACC = 64; BUF = 24; NB = 9; PD = 6; BB = 8
vA, vB, vB2, vG, vB0, vBS = 1, 2, 3, 4, 5, 60

def a_reads(g):
    u, t = divmod(g, 3)
    b = BUF + 4 * (g % NB)
    off = (u % NS) * SUB + t * 128
    return [f"ds_read_b64_tr_b16 v[{b}:{b+1}], v{vA} offset:{off}",
            f"ds_read_b64_tr_b16 v[{b+2}:{b+3}], v{vA} offset:{off+4*384}"]

def part_ops(grp):
    ops = []
    for t in range(3):
        acc = ACC + 16 * (3 * grp + t)
        for h in range(2):
            o = 208 + 4 * ((2 * t + h) % 6)
            ops.append("\n".join(f"v_cvt_pk_bf16_f32 v{o+x}, v{acc+8*h+2*x}, v{acc+8*h+2*x+1}" for x in range(2)))
            ops.append("\n".join(f"v_cvt_pk_bf16_f32 v{o+x}, v{acc+8*h+2*x}, v{acc+8*h+2*x+1}" for x in range(2, 4)))
            ops.append(f"buffer_store_dwordx4 v[{o}:{o+3}], v{vG}, s[{S_WS}:{S_WS+3}], s47 offen sc0 sc1\ns_add_u32 s47, s47, 1024")
    return ops

def gemm_stream(mode):
    lines = []; fifo = Fifo()
    def T(x): lines.append(("t", x))
    def b_upd():
        T("s_add_u32 s40, s40, 8192\ns_cmp_eq_u32 s40, 73728\ns_cselect_b32 s40, 0, s40")
    def b_read(kk):
        if mode == 1:
            nb = BB + 4 * (kk % 2)
            T(f"v_add_u32 v{vB}, s40, v{vBS + kk % 4}")
            T(f"ds_read_b128 v[{nb}:{nb+3}], v{vB} offset:{(kk % 4) * 2048}")
        else:
            if kk % 4 == 0 and kk > 0: T(f"v_add_u32 v{vB}, s40, v{vB0}")
            nb = BB + 4 * (kk % 4)
            T(f"ds_read_b128 v[{nb}:{nb+3}], v{vB} offset:{(kk % 4) * 2048}")
        fifo.push(("b", kk))
    lines.append(("mark", -1))
    b_read(0)
    if mode == 2: b_read(1)
    for g in range(PD):
        for txt in a_reads(g): T(txt); fifo.push(("f", g))
    pend = []
    for g in range(324):
        lines.append(("mark", g))
        S, i = divmod(g, 9)
        kk = S if mode == 1 else g // 3
        tgt = g + 1 if i in (0, 2, 4, 6) else (g if i == 8 else None)
        if tgt is not None:
            c = fifo.count_after(("f", tgt))
            c = min(c, fifo.count_after(("b", S if mode == 1 else tgt // 3)))
            T(f"s_waitcnt lgkmcnt({min(c,15)})")
        b = BUF + 4 * (g % NB)
        if mode == 1:
            bb = BB + 4 * (kk % 2); acc = ACC + 16 * i; first = False
        else:
            bb = BB + 4 * (kk % 4); acc = ACC + 16 * (3 * (g // 108) + g % 3); first = kk % 36 == 0
        cc = "0" if first else f"v[{acc}:{acc+15}]"
        T(f"v_mfma_f32_32x32x16_bf16 v[{acc}:{acc+15}], v[{b}:{b+3}], v[{bb}:{bb+3}], {cc}")
        if g + PD < 324:
            for txt in a_reads(g + PD): T(txt); fifo.push(("f", g + PD))
        if mode == 1:
            if i == 1 and (kk + 1) % 4 == 0: b_upd()
            if i == 3 and kk + 1 < 36: b_read(kk + 1)
        else:
            if g % 3 == 0 and (kk + 2) % 4 == 0: b_upd()
            if g % 3 == 1 and kk + 2 < 108: b_read(kk + 2)
            if pend and i in (2, 5) and S % 12 >= 2: T(pend.pop(0))
        if i == 8 and S < 35: T("s_barrier")
        if mode == 2 and g % 108 == 107:
            assert not pend, len(pend)
            pend = part_ops(g // 108)
    if mode == 2:
        T("s_nop 7\ns_nop 3")
        for p in pend: T(p)
    return lines

def emit_loop(A, lines, label, start, period, count, total):
    def seg(g0, g1):
        out = []; on = False
        for m, v in lines:
            if m == "mark": on = g0 <= v < g1
            elif on: out.append(v)
        return out
    if count > 1:
        body = seg(start, start + period)
        for it in range(1, count): assert seg(start + period * it, start + period * (it + 1)) == body, it
        for t in seg(-1, start): A(t)
        A(f"s_mov_b32 s45, {count}\n{label}:")
        k = 0; nm = sum(t.startswith("v_mfma") for t in body)
        for t in body:
            A(t)
            if t.startswith("v_mfma"):
                k += 1
                if k == nm: A("s_sub_u32 s45, s45, 1\ns_cmp_lg_u32 s45, 0")
        A(f"s_cbranch_scc1 {label}")
        for t in seg(start + period * count, total): A(t)
    else:
        for t in seg(-1, total): A(t)

def twiddle_gen(A, T):
    L = T + 15; ARG = T + 4; STEP = T + 8; TS = T + 9; AD = T + 10
    A(f"v_and_b32 v{L}, 63, v0")
    A(f"s_lshl_b32 s41, s{S_J}, 4\nv_and_b32 v{T}, 15, v{L}\nv_add_u32 v{T}, s41, v{T}")
    A(f"s_and_b32 s41, s{S_WAVE}, 3\ns_lshr_b32 s46, s{S_WAVE}, 2\ns_lshl_b32 s47, s46, 5\ns_add_u32 s47, s47, s41")
    A(f"v_lshrrev_b32 v{T+1}, 5, v{L}\nv_lshlrev_b32 v{T+1}, 3, v{T+1}\nv_add_u32 v{T+1}, s47, v{T+1}")
    A(f"v_bfe_u32 v{T+2}, v{L}, 4, 1\nv_cvt_f32_u32 v{T+2}, v{T+2}\nv_mul_f32 v{T+2}, 0.25, v{T+2}")
    A(f"s_mov_b32 s47, {f32bits(1.0/576)}")
    for ii in range(4):
        A(f"v_add_u32 v{T+3}, {16*(ii>>1)+4*(ii&1)}, v{T+1}\nv_mul_u32_u24 v{T+3}, v{T}, v{T+3}\nv_cvt_f32_u32 v{T+3}, v{T+3}\nv_fma_f32 v{T+3}, v{T+3}, s47, v{T+2}\nv_fract_f32 v{ARG+ii}, v{T+3}")
    A(f"v_lshlrev_b32 v{T+3}, 6, v{T}\nv_cvt_f32_u32 v{T+3}, v{T+3}\nv_mul_f32 v{T+3}, s47, v{T+3}\nv_fract_f32 v{STEP}, v{T+3}\nv_mov_b32 v{TS}, 0")
    A("s_cmp_ge_u32 s41, 2\ns_cselect_b32 s42, 6, 5")
    A(f"s_lshl_b32 s41, s41, 10\ns_lshl_b32 s46, s46, 3\ns_add_u32 s41, s41, s46\ns_add_u32 s41, s41, 18432")
    A(f"v_lshlrev_b32 v{AD}, 4, v{L}\nv_add_u32 v{AD}, s41, v{AD}")
    A("s_mov_b32 s46, 9\ns_movk_i32 s41, 4096\nL_twl:")
    for ii in range(4): A(f"v_cos_f32 v{T+ii}, v{ARG+ii}")
    for ii in range(4): A(f"v_add_f32 v{ARG+ii}, v{ARG+ii}, v{STEP}")
    A(f"v_cvt_pk_bf16_f32 v{T+12}, v{T}, v{T+1}\nv_cvt_pk_bf16_f32 v{T+13}, v{T+2}, v{T+3}")
    for ii in range(4): A(f"v_fract_f32 v{ARG+ii}, v{ARG+ii}")
    A(f"ds_write_b64 v{AD}, v[{T+12}:{T+13}]\ns_cmp_eq_u32 s46, s42\ns_cselect_b32 s47, {4096+18432}, s41\nv_add_u32 v{AD}, s47, v{AD}")
    A(f"v_lshlrev_b32 v{T}, 16, v{T+12}\nv_and_b32 v{T+1}, 0xffff0000, v{T+12}\nv_lshlrev_b32 v{T+2}, 16, v{T+13}\nv_and_b32 v{T+3}, 0xffff0000, v{T+13}")
    A(f"v_add_f32 v{T}, v{T}, v{T+1}\nv_add_f32 v{T+2}, v{T+2}, v{T+3}\nv_add_f32 v{TS}, v{TS}, v{T}\nv_add_f32 v{TS}, v{TS}, v{T+2}")
    A("s_sub_u32 s46, s46, 1\ns_cmp_lg_u32 s46, 0\ns_cbranch_scc1 L_twl")

def st(A, stamp, n):
    if stamp: A(f"s_memtime s[{60+2*n}:{61+2*n}]")

import numpy as np
def bf16_bits(x):
    u = np.asarray(x, np.float32).view(np.uint32)
    return ((u + 0x7FFF + ((u >> 16) & 1)) >> 16).astype(np.uint16)
def tw_table():
    T = np.zeros((5, 36, 64, 8), np.float64)
    lane = np.arange(64); m = lane & 31; hi = lane >> 5
    for u in range(5):
        k = 16 * u + (m & 15)
        for Q in range(9):
            for c in range(4):
                for i in range(8):
                    d = 64 * Q + 16 * (i >> 1) + 8 * hi + 4 * (i & 1) + c
                    ang = 2 * np.pi * ((k * d) % 576) / 576
                    T[u, 4 * Q + c, :, i] = np.where(m < 16, np.cos(ang), -np.sin(ang))
    return bf16_bits(T)
def data_section():
    q = tw_table().reshape(-1).view(np.uint64)
    out = ['.section .rodata,"a"', ".p2align 8", "tw_tab:"]
    for i in range(0, len(q), 8):
        out.append(".quad " + ",".join(hex(int(v)) for v in q[i:i+8]))
    return "\n".join(out) + "\n"

def tw_dma(A):
    A("s_getpc_b64 s[44:45]\ns_add_u32 s44, s44, tw_tab@rel32@lo+4\ns_addc_u32 s45, s45, tw_tab@rel32@hi+12")
    A(f"s_mov_b32 s46, {5*36864}\ns_mov_b32 s47, 0x00020000")
    A(f"s_mul_i32 s40, s{S_J}, 36864\ns_mul_i32 s41, s31, 18432\ns_add_u32 s40, s40, s41\ns_mul_i32 s41, s31, 36864\ns_add_u32 s41, s41, 18432\nv_lshlrev_b32 v{LT}, 4, v{VL}")
    for i in range(18):
        if i % 3 == 0: A(f"s_mov_b32 m0, s41\ns_add_u32 s41, s41, 3072")
        A(f"buffer_load_dwordx4 v{LT}, s[44:47], s40 offen offset:{1024*(i%3)} lds")
        if i % 3 == 2: A("s_add_u32 s40, s40, 3072")

def gen_ln_loads(A):
    A(f"v_and_b32 v2, 63, v0\nv_lshrrev_b32 v3, 3, v2\nv_mul_u32_u24 v3, 1152, v3\nv_and_b32 v4, 7, v2\nv_lshl_add_u32 v3, v4, 4, v3")
    A(f"s_lshl_b32 s40, s{S_RB}, 3\ns_add_u32 s40, s40, s{S_WAVE}\ns_mul_i32 s40, s40, 9216\ns_add_u32 s41, s40, {4*9216}")
    for i in range(9): A(f"buffer_load_dwordx4 v[{64+4*i}:{67+4*i}], v3, s[{S_X}:{S_X+3}], s40 offen offset:{128*i}")
    for i in range(9): A(f"buffer_load_dwordx4 v[{200+4*i}:{203+4*i}], v3, s[{S_X}:{S_X+3}], s41 offen offset:{128*i}")

def red8(A, r, t):
    A(f"s_nop 1\nv_add_f32_dpp v{r}, v{r}, v{r} quad_perm:[1,0,3,2] row_mask:0xf bank_mask:0xf")
    A(f"s_nop 1\nv_add_f32_dpp v{r}, v{r}, v{r} quad_perm:[2,3,0,1] row_mask:0xf bank_mask:0xf")
    A(f"s_nop 1\nv_add_f32_dpp v{r}, v{r}, v{r} row_half_mirror row_mask:0xf bank_mask:0xf")

def bf16r(A, dst, src):
    A(f"v_cvt_pk_bf16_f32 v{dst}, v{src}, v{src}\nv_and_b32 v{dst}, 0xffff0000, v{dst}")

def gen_ln(A, stamp=False):
    U = 100
    A(f"v_and_b32 v2, 63, v0\nv_lshrrev_b32 v3, 3, v2\nv_and_b32 v4, 7, v2\nv_xor_b32 v3, v3, v4\nv_lshlrev_b32 v3, 4, v3")
    A(f"v_lshrrev_b32 v5, 1, v4\nv_lshl_add_u32 v3, v5, 11, v3\nv_and_b32 v5, 1, v4\nv_lshl_add_u32 v3, v5, 9, v3")
    A(f"s_lshl_b32 s40, s{S_WAVE}, 7\ns_add_u32 s40, s40, {L_H}")
    A("v_add_u32 v3, s40, v3\nv_add_u32 v4, 32768, v3")
    A(f"s_waitcnt vmcnt(9)")
    if stamp: A("s_memtime s[80:81]")
    for d in range(36): A(f"v_lshlrev_b32 v{U+2*d}, 16, v{64+d}\nv_and_b32 v{U+2*d+1}, 0xffff0000, v{64+d}")
    A("s_mov_b32 s45, 2\nL_ln:")
    A(f"v_pk_add_f32 v[6:7], v[{U}:{U+1}], v[{U+2}:{U+3}]\nv_pk_add_f32 v[8:9], v[{U+4}:{U+5}], v[{U+6}:{U+7}]")
    for d in range(4, 36): A(f"v_pk_add_f32 v[{6+2*(d%2)}:{7+2*(d%2)}], v[{6+2*(d%2)}:{7+2*(d%2)}], v[{U+2*d}:{U+2*d+1}]")
    A("v_pk_add_f32 v[6:7], v[6:7], v[8:9]\nv_add_f32 v6, v6, v7")
    red8(A, 6, 10)
    A(f"v_mul_f32 v6, {-1.0/576}, v6\nv_mov_b32 v7, v6")
    for d in range(36):
        A(f"v_pk_add_f32 v[{U+2*d}:{U+2*d+1}], v[{U+2*d}:{U+2*d+1}], v[6:7]")
        if d < 2: A(f"v_pk_mul_f32 v[{8+2*d}:{9+2*d}], v[{U+2*d}:{U+2*d+1}], v[{U+2*d}:{U+2*d+1}]")
        else: A(f"v_pk_fma_f32 v[{8+2*(d%2)}:{9+2*(d%2)}], v[{U+2*d}:{U+2*d+1}], v[{U+2*d}:{U+2*d+1}], v[{8+2*(d%2)}:{9+2*(d%2)}]")
    A("v_pk_add_f32 v[8:9], v[8:9], v[10:11]\nv_add_f32 v8, v8, v9")
    red8(A, 8, 10)
    A(f"v_mul_f32 v8, {1.0/576}, v8")
    bf16r(A, 7, 6); A("v_sub_f32 v6, v7, v6")
    bf16r(A, 8, 8); A(f"v_add_f32 v8, {1e-5}, v8"); bf16r(A, 8, 8)
    A("v_sqrt_f32 v8, v8\ns_nop 0"); bf16r(A, 8, 8)
    A("v_rcp_f32 v8, v8\ns_nop 0\nv_mov_b32 v9, v8\nv_mul_f32 v6, v6, v8\nv_mov_b32 v7, v6")
    for i in range(9):
        for x in range(4):
            d = 4 * i + x
            A(f"v_pk_fma_f32 v[{12+2*(x%2)}:{13+2*(x%2)}], v[{U+2*d}:{U+2*d+1}], v[8:9], v[6:7]\nv_cvt_pk_bf16_f32 v{64+d}, v{12+2*(x%2)}, v{13+2*(x%2)}")
        if i < 4: A(f"ds_write_b128 v3, v[{64+4*i}:{67+4*i}] offset:{i*8192}")
        else: A(f"ds_write_b128 v4, v[{64+4*i}:{67+4*i}] offset:{(i-4)*8192}")
    A("s_sub_u32 s45, s45, 1\ns_cmp_eq_u32 s45, 0\ns_cbranch_scc1 L_lnd")
    if stamp: A("s_memtime s[82:83]")
    A("v_add_u32 v3, 1024, v3\nv_add_u32 v4, 1024, v4\ns_waitcnt vmcnt(0)")
    A(f"v_and_b32 v5, 31, v0\nv_lshlrev_b32 v5, 1, v5\ns_lshr_b32 s40, s{S_WAVE}, 1\ns_lshl_b32 s40, s40, 6\ns_mul_i32 s41, s{S_J}, 1152\ns_add_u32 s40, s40, s41")
    for t in range(9): A(f"buffer_load_ushort v{180+t}, v5, s[{S_MISC}:{S_MISC+3}], s40 offen offset:{128*t}")
    for d in range(36): A(f"v_lshlrev_b32 v{U+2*d}, 16, v{200+d}\nv_and_b32 v{U+2*d+1}, 0xffff0000, v{200+d}")
    A("s_branch L_ln\nL_lnd:")

def gen_mwave(A, stamp=False):
    A("L_mwave:")
    A(f"s_and_b32 s30, s{S_WAVE}, 1\ns_lshr_b32 s31, s{S_WAVE}, 1")
    A("v_and_b32 v240, 63, v0\nv_lshrrev_b32 v241, 5, v240")
    A("v_bfe_u32 v242, v240, 2, 2\nv_mul_u32_u24 v243, 384, v242\nv_lshrrev_b32 v242, 1, v242\nv_xor_b32 v242, s31, v242\nv_lshl_add_u32 v243, v242, 6, v243")
    A(f"v_bfe_u32 v242, v240, 4, 1\nv_lshl_add_u32 v243, v242, 5, v243\nv_and_b32 v242, 3, v240\nv_lshl_add_u32 v243, v242, 3, v243\nv_mul_u32_u24 v242, {RHALF}, v241\nv_add_u32 v{vA}, v242, v243")
    A(f"v_lshlrev_b32 v{vG}, 4, v240")
    A(f"s_lshl_b32 s46, s30, 10\ns_add_u32 s46, s46, {L_H}\nv_add_u32 v{vB0}, s46, v{vG}")
    for q in range(4):
        A(f"v_lshlrev_b32 v242, 4, v241\nv_xor_b32 v242, {32*q}, v242\nv_xor_b32 v{vBS+q}, v242, v{vB0}")
    A(f"v_cmp_gt_u32 vcc, 32, v240\nv_mov_b32 v242, 0x3f80\nv_mov_b32 v{BB+9}, 0\nv_mov_b32 v{BB+10}, 0\nv_mov_b32 v{BB+11}, 0\nv_cndmask_b32 v{BB+8}, 0, v242, vcc")
    A("s_waitcnt vmcnt(0)")
    for t in range(9):
        b = BUF + 4 * t
        A(f"v_mov_b32 v{b}, v{180+t}\nv_mov_b32 v{b+1}, 0\nv_mov_b32 v{b+2}, 0\nv_mov_b32 v{b+3}, 0")
    A("s_waitcnt lgkmcnt(0)\ns_barrier")
    st(A, stamp, 5)
    A(f"s_cmp_ge_u32 s{S_J}, 5\ns_cbranch_scc1 L_m_nop0")
    A("s_mov_b32 s40, 0x05040100\ns_mov_b32 s41, 0x07060302\ns_cmp_eq_u32 s31, 0\ns_cselect_b32 s42, s40, s41")
    A(f"s_lshl_b32 s46, s31, 10\nv_add_u32 v246, s46, v{vG}\nv_add_u32 v247, 16384, v246")
    for q in range(4): A(f"v_add_u32 v{248+q}, 32768, v{vBS+q}")
    P0A, P0B = 176, 192
    def twr(dst, phi):
        a = tw_addr(phi)
        return f"ds_read_b128 v[{dst}:{dst+3}], v246 offset:{a}" if a < 60000 else f"ds_read_b128 v[{dst}:{dst+3}], v247 offset:{a-16384}"
    def p0_reads(Q):
        r = 64 + 24 * (Q % 3)
        for t in range(4):
            off = (4 * Q + t) * 2048
            base = vBS + t if off < 32768 else 248 + t
            if off >= 32768: off -= 32768
            A(f"ds_read_b128 v[{r+4*t}:{r+4*t+3}], v{base} offset:{off}")
        A(twr(r + 16, 4 * Q)); A(twr(r + 20, 4 * Q + 2))
    p0_reads(0); p0_reads(1)
    for Q in range(9):
        A(f"s_waitcnt lgkmcnt({6 if Q < 8 else 0})")
        r = 64 + 24 * (Q % 3); e = 144 + 8 * (Q % 2)
        for t in range(4): A(f"v_perm_b32 v{e+t}, v{r+4*t+2}, v{r+4*t}, s42")
        for t in range(4): A(f"v_perm_b32 v{e+4+t}, v{r+4*t+3}, v{r+4*t+1}, s42")
        if Q + 2 < 9: p0_reads(Q + 2)
        else: A("s_nop 0")
        c0 = "0" if Q == 0 else f"v[{P0A}:{P0A+15}]"; c1 = "0" if Q == 0 else f"v[{P0B}:{P0B+15}]"
        A(f"v_mfma_f32_32x32x16_bf16 v[{P0A}:{P0A+15}], v[{r+16}:{r+19}], v[{e}:{e+3}], {c0}")
        A(f"v_mfma_f32_32x32x16_bf16 v[{P0B}:{P0B+15}], v[{r+20}:{r+23}], v[{e+4}:{e+7}], {c1}")
    A(f"s_lshl_b32 s46, s{S_WAVE}, 12\ns_add_u32 s46, s46, {L_F}\nv_add_u32 v246, s46, v{vG}")
    A(f"s_xor_b32 s46, s{S_WAVE}, 2\ns_lshl_b32 s46, s46, 12\ns_add_u32 s46, s46, {L_F}\nv_add_u32 v247, s46, v{vG}")
    A("s_cmp_eq_u32 s31, 0\ns_cselect_b32 s40, 1.0, -1.0\ns_nop 7")
    for x in range(16): A(f"v_fma_f32 v{80+x}, -v{P0B+x}, s40, v{P0A+x}")
    for x in range(4): A(f"ds_write_b128 v246, v[{80+4*x}:{83+4*x}] offset:{1024*x}")
    for x in range(16): A(f"v_fma_f32 v{64+x}, v{P0B+x}, s40, v{P0A+x}")
    A(f"s_lshl_b32 s46, s{S_RB}, 6\ns_lshl_b32 s47, s30, 5\ns_add_u32 s46, s46, s47\ns_lshl_b32 s46, s46, 4")
    A(f"v_and_b32 v243, 31, v240\nv_lshlrev_b32 v243, 4, v243\nv_add_u32 v243, s46, v243\nv_lshl_add_u32 v243, v241, 15, v243")
    A(f"s_mul_i32 s46, s31, {40*32768}\ns_lshl_b32 s47, s{S_J}, 17\ns_add_u32 s48, s46, s47\ns_add_u32 s48, s48, {WS_X1}")
    A("s_waitcnt lgkmcnt(0)\ns_barrier")
    st(A, stamp, 6)
    for x in range(4): A(f"ds_read_b128 v[{96+4*x}:{99+4*x}], v247 offset:{1024*x}")
    A("s_waitcnt lgkmcnt(0)")
    X1T = 208
    A("s_cmp_eq_u32 s31, 0\ns_cbranch_scc0 L_x1b")
    for rr in range(8):
        k, r_, t = 64 + rr, 96 + rr, X1T + 4 * rr
        A(f"v_add_f32 v{t}, v{k}, v{r_}\nv_add_f32 v{t+1}, v{k+8}, v{r_+8}\nv_sub_f32 v{t+2}, v{k}, v{r_}\nv_sub_f32 v{t+3}, v{r_+8}, v{k+8}")
    A("s_branch L_x1s\nL_x1b:")
    for rr in range(8):
        k, r_, t = 64 + rr, 96 + rr, X1T + 4 * rr
        A(f"v_add_f32 v{t}, v{r_}, v{k+8}\nv_sub_f32 v{t+1}, v{r_+8}, v{k}\nv_sub_f32 v{t+2}, v{r_}, v{k+8}\nv_add_f32_e64 v{t+3}, -v{r_+8}, -v{k}")
    A("L_x1s:")
    for q in range(2):
        for sg in range(2):
            o = 112 + 8 * q + 4 * sg
            for jx in range(4):
                t = X1T + 4 * (4 * q + jx) + 2 * sg
                A(f"v_cvt_pk_bf16_f32 v{o+jx}, v{t}, v{t+1}")
            A(f"s_add_u32 s50, s48, {(2*q + 20*sg)*32768}")
            A(f"buffer_store_dwordx4 v[{o}:{o+3}], v243, s[{S_WS}:{S_WS+3}], s50 offen sc0 sc1")
    A("s_nop 1")
    A("L_x1e:\nL_m_nop0:")
    A(f"s_lshl_b32 s40, s{S_K0}, 11")
    for t in range(9):
        acc = ACC + 16 * t; b = BUF + 4 * t
        A(f"v_mfma_f32_32x32x16_bf16 v[{acc}:{acc+15}], v[{b}:{b+3}], v[{BB+8}:{BB+11}], 0")
    A("s_barrier")
    st(A, stamp, 0)
    emit_loop(A, gemm_stream(1), "L_g1", start=4, period=36, count=8, total=324)
    st(A, stamp, 1)
    A("s_barrier")
    A(f"s_lshl_b32 s46, s31, 12\nv_add_u32 v243, s46, v{vB0}\nv_add_u32 v246, 32768, v243")
    for t in range(9):
        acc = ACC + 16 * t; o = 248
        for x in range(16):
            A(f"v_mul_f32_e64 v{acc+x}, v{acc+x}, |v{acc+x}|")
        for x in range(8): A(f"v_cvt_pk_bf16_f32 v{o+x}, v{acc+2*x}, v{acc+2*x+1}")
        for x in range(8): A(f"v_pk_max_i16 v{o+x}, v{o+x}, 0")
        for h in range(2):
            if t < 4: A(f"ds_write_b128 v243, v[{o+4*h}:{o+4*h+3}] offset:{t*8192+h*2048}")
            else: A(f"ds_write_b128 v246, v[{o+4*h}:{o+4*h+3}] offset:{(t-4)*8192+h*2048}")
    A(f"s_lshl_b32 s47, s2, 2\ns_add_u32 s47, s47, s{S_WAVE}\ns_mul_i32 s47, s47, 18432\ns_add_u32 s47, s47, {WS_PART}")
    A(f"s_lshl_b32 s40, s{S_K0}, 11\nv_add_u32 v{vB}, s40, v{vB0}")
    A("s_waitcnt lgkmcnt(0)\ns_barrier")
    st(A, stamp, 2)
    emit_loop(A, gemm_stream(2), "L_g2", 0, 0, 1, 324)
    if stamp:
        st(A, stamp, 3)
        A("s_waitcnt vmcnt(0)\ns_memtime s[68:69]\ns_memrealtime s[74:75]\ns_waitcnt lgkmcnt(0)\ns_sub_u32 s74, s74, s56")
        for i, s in enumerate([60, 62, 64, 66, 68, 74, 70, 72]):
            if s != 74: A(f"s_sub_u32 s{s}, s{s}, s58")
            A(f"v_mov_b32 v{24+i}, s{s}")
        A(f"s_lshl_b32 s46, s2, 7\ns_lshl_b32 s47, s{S_WAVE}, 5\ns_add_u32 s46, s46, s47\ns_add_u32 s46, s46, {WS_DBG}\nv_mov_b32 v40, 0")
        A(f"buffer_store_dwordx4 v[24:27], v40, s[{S_WS}:{S_WS+3}], s46 offen\nbuffer_store_dwordx4 v[28:31], v40, s[{S_WS}:{S_WS+3}], s46 offen offset:16")
        for i, sx in enumerate([76, 78, 80, 82, 84]): A(f"s_sub_u32 s{sx}, s{sx}, s58\nv_mov_b32 v{32+i}, s{sx}")
        A(f"s_add_u32 s46, s46, 0x10000\nbuffer_store_dwordx4 v[32:35], v40, s[{S_WS}:{S_WS+3}], s46 offen\nbuffer_store_dword v36, v40, s[{S_WS}:{S_WS+3}], s46 offen offset:16")
    A("s_endpgm")

def divc(A, c, dst_q, dst_r, src, tmp):
    A(f"v_cvt_f32_u32 v{tmp}, v{src}\nv_add_f32 v{tmp}, 0.5, v{tmp}\nv_mul_f32 v{tmp}, {1.0/c}, v{tmp}\nv_cvt_u32_f32 v{dst_q}, v{tmp}")
    A(f"v_mul_u32_u24 v{tmp}, {c}, v{dst_q}\nv_sub_u32 v{dst_r}, v{src}, v{tmp}")
def div36(A, q, r, src, tmp): divc(A, 36, q, r, src, tmp)
def split3(A, src, d0, d1, t):
    A(f"v_cvt_pk_bf16_f32 v{t}, v{src}, v{src}\nv_and_b32 v{t}, 0xffff0000, v{t}\nv_sub_f32 v{t+1}, v{src}, v{t}")
    A(f"v_cvt_pk_bf16_f32 v{t+2}, v{t+1}, v{t+1}\nv_and_b32 v{t+2}, 0xffff0000, v{t+2}\nv_sub_f32 v{t+1}, v{t+1}, v{t+2}")
    A(f"v_lshrrev_b32 v{t}, 16, v{t}\nv_or_b32 v{d0}, v{t}, v{t+2}")
    A(f"v_cvt_pk_bf16_f32 v{d1}, v{t+1}, v{t+1}\nv_and_b32 v{d1}, 0xffff, v{d1}")

VL = 240; VX = 241; VW1 = 242; VW2 = 245; LT = 248
def ld_stage(A, gemm):
    srd, VW = (S_W1, VW1) if gemm == 1 else (S_W2, VW2)
    for u in range(3):
        A(f"s_mov_b32 m0, s51\ns_add_u32 s51, s51, {SUB}")
        for i in range(3): A(f"buffer_load_dwordx4 v{VW+i}, s[{srd}:{srd+3}], s52 offen offset:{1024*i} lds")
        if gemm == 1:
            A(f"s_add_u32 s52, s52, {384 if u < 2 else 16*9216-768}")
        else:
            A(f"s_add_u32 s52, s52, {16*1152}")
        if gemm == 2 or u == 2: A("s_sub_u32 s48, s48, 1\ns_cmp_eq_u32 s48, 0\ns_cselect_b32 s52, s53, s52")
    A("s_cmp_eq_u32 s51, s49\ns_cselect_b32 s51, s50, s51")

def gen_loader_pre(A):
    T = LT
    A(f"s_sub_u32 s31, s{S_WAVE}, 4\nv_and_b32 v{VL}, 63, v0")
    for i in range(3):
        A(f"v_add_u32 v{T}, {64*i}, v{VL}")
        divc(A, 24, T+1, T+2, T, T+3)
        A(f"v_bfe_u32 v{T+3}, v{T+1}, 1, 1\nv_lshlrev_b32 v{T+3}, 2, v{T+3}\nv_xor_b32 v{T+2}, v{T+2}, v{T+3}\nv_lshlrev_b32 v{T+2}, 4, v{T+2}")
        if i: A(f"v_subrev_u32 v{T+2}, {1024*i}, v{T+2}")
        A(f"v_mul_u32_u24 v{T+3}, 9216, v{T+1}\nv_add_u32 v{VW1+i}, v{T+2}, v{T+3}")
        A(f"v_and_b32 v{T+3}, 3, v{T+1}\nv_bfe_u32 v{T+4}, v{T+1}, 2, 1\nv_lshl_add_u32 v{T+3}, v{T+4}, 3, v{T+3}\nv_mul_u32_u24 v{T+3}, 1152, v{T+3}\nv_add_u32 v{VW2+i}, v{T+2}, v{T+3}")
    A(f"s_mul_i32 s53, s{S_J}, 1152\ns_mul_i32 s47, s31, {8*9216}\ns_add_u32 s53, s53, s47")
    A(f"s_mul_i32 s47, s{S_K0}, {16*9216}\ns_add_u32 s52, s53, s47\ns_sub_u32 s48, 36, s{S_K0}")
    A(f"s_mul_i32 s50, s31, {RHALF}\ns_mov_b32 s51, s50\ns_add_u32 s49, s50, {RHALF}")
    A("s_barrier")
    for S in range(2): ld_stage(A, 1)

def g2_setup(A, grp):
    A(f"s_mul_i32 s53, s{S_J}, {576*1152}\ns_mul_i32 s47, s31, {4*1152}\ns_add_u32 s53, s53, s47\ns_add_u32 s53, s53, {384*grp}")
    A(f"s_mul_i32 s47, s{S_K0}, {16*1152}\ns_add_u32 s52, s53, s47\ns_sub_u32 s48, 36, s{S_K0}")

def gen_loader(A, stamp=False):
    A("L_loader:")
    gen_loader_pre(A)
    A("s_barrier")
    A(f"s_cmp_ge_u32 s{S_J}, 5\ns_cbranch_scc1 L_l_nop0\ns_barrier\nL_l_nop0:")
    ld_stage(A, 1)
    A("s_waitcnt vmcnt(9)\ns_barrier")
    A("s_setprio 2")
    def interval(gemm):
        ld_stage(A, gemm); A("s_waitcnt vmcnt(9)\ns_barrier")
    A("s_mov_b32 s45, 33\nL_ld1:")
    interval(1)
    A("s_sub_u32 s45, s45, 1\ns_cmp_lg_u32 s45, 0\ns_cbranch_scc1 L_ld1")
    g2_setup(A, 0)
    for s in range(3): interval(2)
    A("s_barrier")
    for grp in range(3):
        if grp: g2_setup(A, grp)
        A(f"s_mov_b32 s45, {9 if grp == 0 else 12}\nL_ld2{grp}:")
        interval(2)
        A(f"s_sub_u32 s45, s45, 1\ns_cmp_lg_u32 s45, 0\ns_cbranch_scc1 L_ld2{grp}")
    A("s_waitcnt vmcnt(0)\ns_barrier\ns_barrier")
    A("s_endpgm")

def gen_wt_loads(A):
    A(f"s_sub_u32 s31, s{S_WAVE}, 6\nv_and_b32 v{VL}, 63, v0\nv_lshlrev_b32 v{VX}, 1, v{VL}")
    A("s_lshr_b32 s40, s2, 5\ns_bfe_u32 s41, s2, 0x30002\ns_lshl_b32 s41, s41, 3\ns_add_u32 s40, s40, s41\ns_and_b32 s41, s2, 3\ns_lshl_b32 s41, s41, 7\ns_add_u32 s40, s40, s41\ns_lshl_b32 s41, s31, 6\ns_add_u32 s40, s40, s41")
    A("s_mul_i32 s40, s40, 578")
    for u3 in range(4):
        for q in range(5):
            r = 16 + (u3 * 5 + q)
            A(f"buffer_load_ushort v{r}, v{VX}, s[32:35], s40 offen offset:{128*q}")
            A(f"buffer_load_ushort v{r+20}, v{VX}, s[36:39], s40 offen offset:{128*q}")
        A(f"s_add_u32 s40, s40, {512*578}")

def gen_worker(A, stamp=False):
    A("L_worker:")
    A(f"s_sub_u32 s31, s{S_WAVE}, 6\nv_and_b32 v{VL}, 63, v0")
    A(f"s_lshr_b32 s40, s2, 3\ns_and_b32 s40, s40, 3\ns_lshl_b32 s40, s40, 1\ns_add_u32 s40, s40, s31\ns_min_u32 s40, s40, {CODE_PF-1}\ns_lshl_b32 s40, s40, 13")
    A(f"s_getpc_b64 s[42:43]\ns_add_u32 s42, s42, main_entry@rel32@lo+4\ns_addc_u32 s43, s43, main_entry@rel32@hi+12\nv_lshlrev_b32 v2, 7, v{VL}\nv_add_u32 v2, s40, v2\nglobal_load_dword v5, v2, s[42:43]")
    A("s_barrier")
    A(f"s_cmp_ge_u32 s{S_J}, 5\ns_cbranch_scc1 L_nowt")
    tw_dma(A)
    A("L_nowt:")
    gen_wt_loads(A)
    A(f"s_mul_i32 s40, s2, 9248\ns_lshl_b32 s41, s31, 4\ns_add_u32 s40, s40, s41\ns_add_u32 s40, s40, {WS_WT}\nv_lshlrev_b32 v{VX}, 5, v{VL}")
    A("s_waitcnt vmcnt(0)")
    for q in range(5):
        for u3 in range(4): A(f"v_lshl_or_b32 v{64+4*q+u3}, v{36+u3*5+q}, 16, v{16+u3*5+q}")
        if q == 4: A("s_mov_b32 exec_lo, -1\ns_mov_b32 exec_hi, 1")
        A(f"buffer_store_dwordx4 v[{64+4*q}:{67+4*q}], v{VX}, s[{S_WS}:{S_WS+3}], s40 offen sc0 sc1\ns_add_u32 s40, s40, 2048")
    A("s_mov_b64 exec, -1")
    A("s_barrier")
    A(f"s_cmp_ge_u32 s{S_J}, 5\ns_cbranch_scc1 L_k_go\ns_barrier\nL_k_go:")
    A("s_mov_b32 s45, 73\nL_kb:\ns_barrier\ns_sub_u32 s45, s45, 1\ns_cmp_lg_u32 s45, 0\ns_cbranch_scc1 L_kb")
    A("s_endpgm")

def gen_main_kernel(name, stamp=False):
    A = Asm()
    A("main_entry:")
    if stamp: A("s_memtime s[58:59]\ns_memrealtime s[56:57]")
    A("s_cmp_ge_u32 s2, 256\ns_cbranch_scc1 L_exit")
    A("s_load_dwordx2 s[4:5], s[0:1], 0\ns_load_dwordx2 s[8:9], s[0:1], 32\ns_load_dwordx2 s[12:13], s[0:1], 48\ns_load_dwordx2 s[16:17], s[0:1], 80")
    A(f"s_load_dwordx2 s[20:21], s[0:1], 40\ns_load_dwordx2 s[32:33], s[0:1], 8\ns_load_dwordx2 s[36:37], s[0:1], 16")
    A(f"s_mov_b32 s34, {2048*578}\ns_mov_b32 s35, 0x00020000\ns_mov_b32 s38, {2048*578}\ns_mov_b32 s39, 0x00020000")
    A(f"v_lshrrev_b32 v1, 6, v0\ns_nop 0\nv_readfirstlane_b32 s{S_WAVE}, v1")
    A(f"s_mov_b32 s6, 2359296\ns_mov_b32 s7, 0x00020000\ns_mov_b32 s10, 5308416\ns_mov_b32 s11, 0x00020000\ns_mov_b32 s14, 5308416\ns_mov_b32 s15, 0x00020000")
    A(f"s_mov_b32 s18, {WS_SIZE}\ns_mov_b32 s19, 0x00020000\ns_mov_b32 s22, 9216\ns_mov_b32 s23, 0x00020000")
    A(f"s_and_b32 s40, s2, 6\ns_bfe_u32 s41, s2, 0x10003\ns_add_u32 s{S_J}, s40, s41")
    A(f"s_and_b32 s40, s2, 1\ns_lshl_b32 s40, s40, 4\ns_lshr_b32 s41, s2, 4\ns_add_u32 s{S_RB}, s40, s41")
    A(f"s_and_b32 s40, s{S_RB}, 15\ns_cmp_ge_u32 s40, 9\ns_cselect_b32 s41, 9, 0\ns_sub_u32 s40, s40, s41\ns_lshl_b32 s{S_K0}, s40, 2")
    A("s_waitcnt lgkmcnt(0)")
    A(f"s_cmp_ge_u32 s{S_WAVE}, 6\ns_cbranch_scc1 L_worker\ns_cmp_ge_u32 s{S_WAVE}, 4\ns_cbranch_scc1 L_loader")
    if stamp: A("s_memtime s[76:77]")
    gen_ln_loads(A)
    A("s_barrier")
    if stamp: A("s_memtime s[78:79]")
    gen_ln(A, stamp)
    if stamp: A("s_memtime s[84:85]")
    gen_mwave(A, stamp)
    gen_loader(A, stamp)
    gen_worker(A, stamp)
    A("L_exit:\ns_endpgm")
    return kernel_header(name) + A.text() + kernel_desc(name, 256, 96) + data_section()
```

```python
from asmlib import *
import gen6 as G
from gen6 import f32bits

class Pool:
    def __init__(self, base, n):
        self.free = [base + 2 * i for i in range(n)]
    def alloc(self): return self.free.pop(0)
    def release(self, r): self.free.insert(0, r)

class C:
    def __init__(self, pair, re=None, im=None):
        self.pair = pair
        self.re = re if re else (pair, 1)
        self.im = im if im else (pair + 1, 1)
    def muli(self, s):
        if s > 0: return C(self.pair, (self.im[0], -self.im[1]), self.re)
        return C(self.pair, self.im, (self.re[0], -self.re[1]))

def neg(r, s): return f"v{r}" if s > 0 else f"-v{r}"

class FFT:
    def __init__(self, A, pool, s_rt2):
        self.A, self.pool, self.k = A, pool, s_rt2
    def addc(self, dst, a, sa, b, sb):
        s1, s2 = sa * a[1], sb * b[1]
        if s1 > 0 and s2 > 0: self.A(f"v_add_f32 v{dst}, v{a[0]}, v{b[0]}")
        elif s1 > 0: self.A(f"v_sub_f32 v{dst}, v{a[0]}, v{b[0]}")
        elif s2 > 0: self.A(f"v_sub_f32 v{dst}, v{b[0]}, v{a[0]}")
        else: self.A(f"v_add_f32_e64 v{dst}, -v{a[0]}, -v{b[0]}")
    def fmak(self, dst, a, b, sb):
        self.A(f"v_fma_f32 v{dst}, {neg(b[0], sb * b[1])}, s{self.k}, {neg(a[0], a[1])}")
    def bfly(self, x, y, scaled=False, free=True):
        p, m = self.pool.alloc(), self.pool.alloc()
        if scaled:
            self.fmak(p, x.re, y.re, 1); self.fmak(p + 1, x.im, y.im, 1)
            self.fmak(m, x.re, y.re, -1); self.fmak(m + 1, x.im, y.im, -1)
        else:
            self.addc(p, x.re, 1, y.re, 1); self.addc(p + 1, x.im, 1, y.im, 1)
            self.addc(m, x.re, 1, y.re, -1); self.addc(m + 1, x.im, 1, y.im, -1)
        if free:
            self.pool.release(x.pair); self.pool.release(y.pair)
        return C(p), C(m)
    def rot45(self, x, s):
        p = self.pool.alloc()
        self.addc(p, x.re, 1, x.im, -s); self.addc(p + 1, x.im, 1, x.re, s)
        self.pool.release(x.pair)
        return C(p)
    def dft4(self, c, sg, odd_scaled=False):
        s0, s1 = self.bfly(c[0], c[2])
        s2, s3 = self.bfly(c[1], c[3])
        s3 = s3.muli(sg)
        o0, o2 = self.bfly(s0, s2, scaled=odd_scaled)
        o1, o3 = self.bfly(s1, s3, scaled=odd_scaled)
        return [o0, o1, o2, o3]
    def dft8(self, x, sg):
        a, b = [], []
        for i in range(4):
            p, m = self.bfly(x[i], x[i + 4]); a.append(p); b.append(m)
        b[1] = self.rot45(b[1], sg)
        b[2] = b[2].muli(sg)
        b[3] = self.rot45(b[3], sg).muli(sg)
        ea = self.dft4(a, sg)
        eb = self.dft4(b, sg, odd_scaled=True)
        return [ea[0], eb[0], ea[1], eb[1], ea[2], eb[2], ea[3], eb[3]]
    def twid(self, x, tw, sg):
        p = self.pool.alloc()
        self.A(f"v_mul_f32_e64 v{p}, {neg(*x.re)}, v{tw}")
        self.A(f"v_mul_f32_e64 v{p+1}, {neg(*x.im)}, v{tw}")
        self.A(f"v_fma_f32 v{p}, {neg(x.im[0], -sg * x.im[1])}, v{tw+1}, v{p}")
        self.A(f"v_fma_f32 v{p+1}, {neg(x.re[0], sg * x.re[1])}, v{tw+1}, v{p+1}")
        self.pool.release(x.pair)
        return C(p)

class FFTRegs:
    def __init__(self, base):
        b = base
        self.TW = b; b += 42
        self.W1 = b; self.R1 = b + 1; b += 2
        self.W2 = b; b += 8
        self.R2 = b; b += 8
        self.R3 = b; b += 8
        self.GX = b; self.GZ = b + 1; b += 2
        self.WV = b; b += 16
        self.T = b; b += 6
        self.POOL = b; b += 2 * 14
        self.end = b

def fft_setup(A, R, vt, L, s_tmp):
    T = R.T
    A(f"v_lshlrev_b32 v{R.W1}, 3, v{vt}\nv_add_u32 v{R.W1}, {L}, v{R.W1}")
    A(f"v_lshrrev_b32 v{T}, 5, v{vt}\nv_lshlrev_b32 v{T}, 11, v{T}\nv_add_u32 v{T}, {L}, v{T}")
    A(f"v_and_b32 v{T+1}, 31, v{vt}\nv_lshlrev_b32 v{T+1}, 3, v{T+1}\nv_add_u32 v{R.R1}, v{T}, v{T+1}")
    for p2 in range(8):
        A(f"v_xor_b32 v{R.W2+p2}, {32*p2}, v{R.R1}")
    A(f"v_bfe_u32 v{T+2}, v{vt}, 2, 3\nv_mul_u32_u24 v{T+3}, 288, v{T+2}\nv_and_b32 v{T+4}, 3, v{vt}\nv_lshlrev_b32 v{T+5}, 3, v{T+4}\nv_add3_u32 v{T+3}, v{T}, v{T+3}, v{T+5}")
    for c in range(8):
        A(f"v_xor_b32 v{R.R2+c}, {32*c}, v{T+3}")
    A(f"v_lshlrev_b32 v{T+3}, 8, v{T+2}\nv_add_u32 v{T+3}, v{T}, v{T+3}")
    A(f"v_lshlrev_b32 v{T+2}, 5, v{T+2}\nv_lshlrev_b32 v{T+5}, 6, v{T+4}\nv_xor_b32 v{T+2}, v{T+2}, v{T+5}\nv_add_u32 v{T+3}, v{T+3}, v{T+2}")
    for e0 in range(4):
        A(f"v_add_u32 v{T+5}, {e0}, v{T+4}\nv_and_b32 v{T+5}, 3, v{T+5}\nv_lshl_add_u32 v{R.R3+e0}, v{T+5}, 3, v{T+3}")
        A(f"v_xor_b32 v{R.R3+4+e0}, 32, v{R.R3+e0}")
    for lvl, (mask, n) in enumerate([(255, 2048), (31, 256), (3, 32)]):
        A(f"v_and_b32 v{T}, {mask}, v{vt}\nv_cvt_f32_u32 v{T}, v{T}")
        for p in range(1, 8):
            tw = R.TW + 14 * lvl + 2 * (p - 1)
            A(f"v_mul_f32 v{T+1}, {p/n}, v{T}\nv_cos_f32 v{tw}, v{T+1}\nv_sin_f32 v{tw+1}, v{T+1}")
    A(f"v_lshlrev_b32 v{R.GX}, 3, v{vt}")
    A(f"v_lshrrev_b32 v{T}, 4, v{vt}\nv_mul_u32_u24 v{T}, 18496, v{T}\nv_and_b32 v{T+1}, 15, v{vt}\nv_lshl_add_u32 v{R.GZ}, v{T+1}, 2, v{T}")

def fft_column_blocks(A_unused, R, s_rt2):
    blocks = []
    pool = Pool(R.POOL, 14)
    x = [C(pool.alloc()) for _ in range(8)]
    def blk(name):
        a = Asm(); blocks.append((name, a)); return a
    def wr(A, addr, off, v):
        assert v.re == (v.pair, 1) and v.im == (v.pair + 1, 1)
        A(f"ds_write_b64 v{addr}, v[{v.pair}:{v.pair+1}] offset:{off}"); pool.release(v.pair)
    def rd(A, addr, off):
        p = pool.alloc(); A(f"ds_read_b64 v[{p}:{p+1}], v{addr} offset:{off}"); return C(p)
    TW = lambda lvl, p: R.TW + 14 * lvl + 2 * (p - 1)
    A = blk("f1"); F = FFT(A, pool, s_rt2)
    y = F.dft8(x, -1)
    for p in range(8):
        v = y[p] if p == 0 else F.twid(y[p], TW(0, p), -1)
        wr(A, R.W1, 2048 * p, v)
    A("s_waitcnt lgkmcnt(0)")
    blk("BAR")
    A = blk("f2"); F = FFT(A, pool, s_rt2)
    x = [rd(A, R.R1, 256 * b) for b in range(8)]
    A("s_waitcnt lgkmcnt(0)")
    y = F.dft8(x, -1)
    for p in range(8):
        v = y[p] if p == 0 else F.twid(y[p], TW(1, p), -1)
        wr(A, R.W2 + p, 256 * p, v)
    A = blk("f3"); F = FFT(A, pool, s_rt2)
    x = [rd(A, R.R2 + c, 0) for c in range(8)]
    A("s_waitcnt lgkmcnt(0)")
    y = F.dft8(x, -1)
    for p in range(8):
        v = y[p] if p == 0 else F.twid(y[p], TW(2, p), -1)
        wr(A, R.R2 + p, 0, v)
    A = blk("f4"); F = FFT(A, pool, s_rt2)
    x = [rd(A, R.R3 + i, 0) for i in range(8)]
    A("s_waitcnt lgkmcnt(0)")
    A(";WAITW")
    for h in range(2):
        y = F.dft4(x[4*h:4*h+4], -1)
        z = []
        for u in range(4):
            i = 4 * h + u
            p = pool.alloc(); v = y[u]
            wr_, wi_ = R.WV + i, R.WV + 8 + i
            A(f"v_mul_f32 v{p}, v{v.pair}, v{wr_}\nv_mul_f32 v{p+1}, v{v.pair+1}, v{wr_}")
            A(f"v_fma_f32 v{p}, -v{v.pair+1}, v{wi_}, v{p}\nv_fma_f32 v{p+1}, v{v.pair}, v{wi_}, v{p+1}")
            pool.release(v.pair); z.append(C(p))
        y = F.dft4(z, +1)
        for e in range(4): wr(A, R.R3 + 4 * h + e, 0, y[e])
    A = blk("i3"); F = FFT(A, pool, s_rt2)
    x = [rd(A, R.R2 + p, 0) for p in range(8)]
    A("s_waitcnt lgkmcnt(0)")
    x = [x[0]] + [F.twid(x[p], TW(2, p), +1) for p in range(1, 8)]
    y = F.dft8(x, +1)
    for c in range(8): wr(A, R.R2 + c, 0, y[c])
    A = blk("i2"); F = FFT(A, pool, s_rt2)
    x = [rd(A, R.W2 + p, 256 * p) for p in range(8)]
    A("s_waitcnt lgkmcnt(0)")
    x = [x[0]] + [F.twid(x[p], TW(1, p), +1) for p in range(1, 8)]
    y = F.dft8(x, +1)
    for b in range(8): wr(A, R.R1, 256 * b, y[b])
    A("s_waitcnt lgkmcnt(0)")
    blk("BAR")
    A = blk("i1"); F = FFT(A, pool, s_rt2)
    x = [rd(A, R.W1, 2048 * p) for p in range(8)]
    A("s_waitcnt lgkmcnt(0)")
    x = [x[0]] + [F.twid(x[p], TW(0, p), +1) for p in range(1, 8)]
    y = F.dft8(x, +1)
    outs = []
    for a in range(8):
        A(f"v_cvt_pk_bf16_f32 v{y[a].pair}, v{y[a].pair}, v{y[a].pair+1}")
        outs.append(y[a].pair)
    return blocks, outs

def x1_addr(A, s_col, s_dst, s_t):
    t, k = s_t, s_t + 1
    A(f"s_mov_b32 s{t}, 0\ns_mov_b32 s{k}, s{s_col}")
    A(f"s_sub_u32 s{t+2}, 144, s{s_col}\ns_cmp_gt_u32 s{s_col}, 72\ns_cselect_b32 s{t}, 3, s{t}\ns_cselect_b32 s{k}, s{t+2}, s{k}")
    A(f"s_sub_u32 s{t+2}, s{s_col}, 144\ns_cmp_ge_u32 s{s_col}, 144\ns_cselect_b32 s{t}, 2, s{t}\ns_cselect_b32 s{k}, s{t+2}, s{k}")
    A(f"s_sub_u32 s{t+2}, 288, s{s_col}\ns_cmp_ge_u32 s{s_col}, 216\ns_cselect_b32 s{t}, 1, s{t}\ns_cselect_b32 s{k}, s{t+2}, s{k}")
    A(f"s_mul_i32 s{t}, s{t}, 20\ns_lshr_b32 s{t+2}, s{k}, 2\ns_add_u32 s{t}, s{t}, s{t+2}\ns_lshl_b32 s{t}, s{t}, 15\ns_and_b32 s{k}, s{k}, 3\ns_lshl_b32 s{k}, s{k}, 2")
    A(f"s_add_u32 s{s_dst}, s{t}, s{k}\ns_add_u32 s{s_dst}, s{s_dst}, {G.WS_X1}")

def gen_fft_kernel(name):
    A = Asm()
    R = FFTRegs(2)
    A(f"s_cmp_ge_u32 s2, 289\ns_cbranch_scc1 L_fft_exit")
    A("s_load_dwordx2 s[4:5], s[0:1], 8\ns_load_dwordx2 s[8:9], s[0:1], 16\ns_load_dwordx2 s[16:17], s[0:1], 80")
    A(f"s_mov_b32 s6, {2048*578}\ns_mov_b32 s7, 0x00020000\ns_mov_b32 s10, {2048*578}\ns_mov_b32 s11, 0x00020000\ns_mov_b32 s18, {G.WS_SIZE}\ns_mov_b32 s19, 0x00020000")
    A(f"s_mov_b32 s20, {f32bits(0.7071067811865476)}")
    x1_addr(A, 2, 21, 24)
    A(f"v_lshlrev_b32 v{R.GX}, 4, v0")
    A("s_waitcnt lgkmcnt(0)")
    for a in range(8):
        p = R.POOL + 2 * a
        A(f"buffer_load_dword v{p}, v{R.GX}, s[16:19], s21 offen\ns_add_u32 s21, s21, 4096")
    A(f"v_mul_u32_u24 v1, 9248, v0\ns_lshl_b32 s22, s2, 5\ns_add_u32 s22, s22, {G.WS_WT}")
    A(f"buffer_load_dwordx4 v[{R.WV}:{R.WV+3}], v1, s[16:19], s22 offen\nbuffer_load_dwordx4 v[{R.WV+4}:{R.WV+7}], v1, s[16:19], s22 offen offset:16")
    fft_setup(A, R, 0, 0, 21)
    blocks, outs = fft_column_blocks(A, R, 20)
    A("s_waitcnt vmcnt(2)")
    for a in range(8):
        p = R.POOL + 2 * a
        A(f"v_and_b32 v{p+1}, 0xffff0000, v{p}\nv_lshlrev_b32 v{p}, 16, v{p}")
    for nm, b in blocks:
        if nm == "BAR": A("s_barrier")
        else:
            for line in b.L:
                if line.strip() == ";WAITW":
                    A("s_waitcnt vmcnt(0)")
                    for i in range(8): A(f"v_and_b32 v{R.WV+8+i}, 0xffff0000, v{R.WV+i}\nv_lshlrev_b32 v{R.WV+i}, 16, v{R.WV+i}")
                else: A.L.append(line)
    A(f"s_lshl_b32 s21, s2, 6\ns_add_u32 s21, s21, {G.WS_Z}")
    for a in range(8):
        A(f"buffer_store_dword v{outs[a]}, v{R.GZ}, s[16:19], s21 offen")
        if a < 7: A(f"s_add_u32 s21, s21, {16*18496}")
    A("L_fft_exit:\ns_endpgm")
    return kernel_header(name) + A.text() + kernel_desc(name, R.end, 32)

if __name__ == "__main__":
    src = f"; @launch grid=(289,1,1) block=(256,1,1) lds=16384\n" + '.amdgcn_target "amdgcn-amd-amdhsa--gfx950"\n' + gen_fft_kernel(NAME + "_kernel")
    open("fft_test.s", "w").write(src)
```

```python
from asmlib import *
import gen6 as G6
from gen6 import *
import gen_fft6 as FF

S_OUT = 64
S_B2 = 68
S_DBGP = 72
S_HW, S_XC, S_RT2 = 30, 28, 54
R = FF.FFTRegs(2)
GB = 124
XR2 = 232
SPIN_MAX = 100000
L_GT = L_H
GTP = 1296
def pq_addr(par, typ): return par * RHALF + 9216 + typ * 9216
STB = 76
def st(A, stamp, n):
    if stamp: A(f"s_memtime s[{STB+2*n}:{STB+1+2*n}]")

def poll_counter(A, name, dw0, vt):
    A(f"v_and_b32 v{vt}, 7, v0\nv_lshlrev_b32 v{vt}, 2, v{vt}\ns_mov_b32 s55, 0")
    A(f"{name}:\nglobal_load_dword v{vt+1}, v{vt}, s[{S_DBGP}:{S_DBGP+1}] offset:{4*dw0} sc0 sc1\ns_waitcnt vmcnt(0)")
    A(f"v_cmp_ne_u32 vcc, 32, v{vt+1}\ns_add_u32 s55, s55, 1\ns_cmp_gt_u32 s55, {SPIN_MAX}\ns_cbranch_scc1 {name}_ok\ns_cmp_eq_u64 vcc, 0\ns_cbranch_scc1 {name}_ok\ns_sleep 4\ns_branch {name}\n{name}_ok:")
def bump_counter(A, dw0, vt):
    A(f"s_and_b32 s55, s2, 7\ns_lshl_b32 s55, s55, 2\nv_mov_b32 v{vt}, s55\nv_mov_b32 v{vt+1}, 1\ns_mov_b64 exec, 1")
    A(f"global_atomic_add v{vt}, v{vt+1}, s[{S_DBGP}:{S_DBGP+1}] offset:{4*dw0} sc1\ns_mov_b64 exec, -1")

def g_gen_lines():
    A = Asm(); T = R.POOL
    A(f"s_and_b32 s56, s{S_J}, 1\ns_mul_i32 s56, s56, 72\ns_lshr_b32 s57, s{S_HW}, 1\ns_mul_i32 s57, s57, 48\ns_add_u32 s56, s56, s57\ns_and_b32 s57, s{S_HW}, 1")
    A(f"v_and_b32 v{T}, 15, v{VL}\nv_add_u32 v{T}, s56, v{T}\nv_cvt_f32_u32 v{T}, v{T}")
    A(f"v_lshrrev_b32 v{T+1}, 5, v{VL}\nv_lshlrev_b32 v{T+1}, 4, v{T+1}\nv_add_u32 v{T+1}, s57, v{T+1}\nv_cvt_f32_u32 v{T+1}, v{T+1}")
    A(f"v_bfe_u32 v{T+2}, v{VL}, 4, 1\nv_cvt_f32_u32 v{T+2}, v{T+2}\nv_mul_f32 v{T+2}, 0.25, v{T+2}")
    V = T + 8
    for t in range(3):
        A(f"v_add_f32 v{T+3}, {16.0*t}, v{T}\nv_mul_f32 v{T+3}, {1.0/576}, v{T+3}\nv_fma_f32 v{T+4}, v{T+3}, v{T+1}, v{T+2}")
        for kap in range(9):
            g = GB + 4 * (9 * t + kap)
            for i in range(8): A(f"v_fmamk_f32 v{V+i}, v{T+3}, {f32bits(float(32*kap+2*i))}, v{T+4}")
            for i in range(8): A(f"v_cos_f32 v{V+i}, v{V+i}")
            if kap == 0:
                A(f"v_cmp_eq_f32 vcc, 0, v{T+1}\nv_mul_f32 v{T+5}, 0.5, v{V}\ns_nop 0\nv_cndmask_b32 v{V}, v{V}, v{T+5}, vcc")
            for x in range(4): A(f"v_cvt_pk_bf16_f32 v{g+x}, v{V+2*x}, v{V+1+2*x}")
    return A.L

def fft_loads(A, s_col, xdst, stride, wload=True):
    FF.x1_addr(A, s_col, 56, 57)
    A(f"v_lshlrev_b32 v{R.GX}, 4, v1")
    for a in range(8): A(f"buffer_load_dword v{xdst+stride*a}, v{R.GX}, s[{S_WS}:{S_WS+3}], s56 offen sc0 sc1\ns_add_u32 s56, s56, 4096")
    if wload: w_loads(A, s_col)
def w_loads(A, s_col):
    A(f"v_mul_u32_u24 v{R.T}, 9248, v1\ns_lshl_b32 s56, s{s_col}, 5\ns_add_u32 s56, s56, {WS_WT}")
    A(f"buffer_load_dwordx4 v[{R.WV}:{R.WV+3}], v{R.T}, s[{S_WS}:{S_WS+3}], s56 offen sc0 sc1\nbuffer_load_dwordx4 v[{R.WV+4}:{R.WV+7}], v{R.T}, s[{S_WS}:{S_WS+3}], s56 offen offset:16 sc0 sc1")

def dc_sel(A, s0, vals):
    A(f"s_and_b32 s55, s{S_J}, 1\ns_cmp_eq_u32 s55, 0")
    for i, (a, b) in enumerate(vals): A(f"s_cselect_b32 s{s0+i}, {a}, {b}")

def gen_tail_f1(A, tag, nitems, s_item):
    A(f"s_and_b32 s40, s{S_RB}, 15\ns_lshl_b32 s40, s40, 4\ns_lshr_b32 s41, s{S_RB}, 4\ns_add_u32 s40, s40, s41")
    A(f"v_bfe_u32 v2, v240, 1, 1\nv_lshlrev_b32 v2, 3, v2\nv_bfe_u32 v3, v240, 2, 2\nv_lshl_add_u32 v2, v3, 1, v2\nv_add_u32 v2, s40, v2\nv_lshlrev_b32 v2, 7, v2")
    A(f"v_and_b32 v3, 1, v240\nv_lshl_add_u32 v2, v3, 3, v2\ns_lshr_b32 s41, s{S_J}, 2\ns_lshl_b32 s42, s41, 2\ns_add_u32 s42, s42, {WS_FLAG}")
    A(f"s_mul_i32 s40, s40, 73728\ns_mul_i32 s41, s41, 18432\ns_add_u32 s40, s40, s41\ns_add_u32 s43, s40, {WS_PART}")
    dc_sel(A, 44, [(0, 4), (5, 10), (15, 99)])
    for n in range(nitems):
        t = 4 + 2 * n
        A(f"s_lshl_b32 s47, s{s_item}, 1\ns_add_u32 s47, s47, {8*n}\nv_lshrrev_b32 v8, 5, v240\nv_add_u32 v8, s47, v8")
        A(f"v_add_u32 v9, s44, v8\nv_cmp_le_u32 vcc, s45, v8\ns_nop 1\nv_cndmask_b32 v10, 0, 8, vcc\nv_add_u32 v9, v9, v10\nv_cmp_le_u32 vcc, s46, v8\ns_nop 1\nv_cndmask_b32 v10, 0, 8, vcc\nv_add_u32 v9, v9, v10")
        A(f"v_bfe_u32 v10, v9, 1, 1\nv_mul_u32_u24 v10, 36864, v10\nv_lshrrev_b32 v11, 2, v9\nv_lshl_add_u32 v10, v11, 11, v10\nv_and_b32 v11, 1, v9\nv_lshl_add_u32 v10, v11, 10, v10")
        A(f"v_bfe_u32 v11, v240, 4, 1\nv_lshl_add_u32 v10, v11, 9, v10\nv_and_b32 v12, 15, v240\nv_lshl_add_u32 v10, v12, 4, v10\ns_bfe_u32 s47, s{S_J}, 0x10001\ns_lshl_b32 s47, s47, 8\nv_add_u32 v{t}, s47, v10")
        A(f"v_mul_u32_u24 v12, {GTP}, v12\nv_lshl_add_u32 v12, v8, 6, v12\nv_lshl_add_u32 v12, v11, 4, v12\nv_add_u32 v{t+1}, {L_GT}, v12")
    A("s_mov_b32 s55, 0")
    A(f"L_pf{tag}:\nbuffer_load_dword v3, v2, s[{S_WS}:{S_WS+3}], s42 offen sc0 sc1\ns_waitcnt vmcnt(0)")
    A(f"v_cmp_ne_u32 vcc, s{S_NONCE}, v3\ns_add_u32 s55, s55, 1\ns_cmp_gt_u32 s55, {SPIN_MAX}\ns_cbranch_scc1 L_pf{tag}_ok\ns_cmp_eq_u64 vcc, 0\ns_cbranch_scc1 L_pf{tag}_ok\ns_sleep 2\ns_branch L_pf{tag}\nL_pf{tag}_ok:")
    for n in range(nitems):
        for jp in range(8):
            dw = (jp & 1) * 8 + (jp >> 1) * 2
            A(f"s_add_u32 s47, s43, {dw*73728}\nbuffer_load_dwordx4 v[{24+32*n+4*jp}:{27+32*n+4*jp}], v{4+2*n}, s[{S_WS}:{S_WS+3}], s47 offen sc0 sc1")
    for n in range(nitems):
        for jp in range(8):
            A(f"s_waitcnt vmcnt({8*(nitems-1-n) + 7-jp})")
            for x in range(4):
                src = 24 + 32 * n + 4 * jp + x
                if jp == 0: A(f"v_lshlrev_b32 v{8+2*x}, 16, v{src}\nv_and_b32 v{9+2*x}, 0xffff0000, v{src}")
                else: A(f"v_lshlrev_b32 v16, 16, v{src}\nv_and_b32 v17, 0xffff0000, v{src}\nv_pk_add_f32 v[{8+2*x}:{9+2*x}], v[{8+2*x}:{9+2*x}], v[16:17]")
        A(f"ds_write_b128 v{5+2*n}, v[8:11]\nds_write_b128 v{5+2*n}, v[12:15] offset:32")

def gen_tail_f2(A, stamp):
    A("L_f2:")
    dc_sel(A, 42, [(0, 144), (9, 18), (27, 99), (0, 32)])
    A(f"s_lshl_b32 s40, s{S_RB}, 2\ns_lshr_b32 s41, s{S_J}, 1\ns_add_u32 s40, s40, s41")
    A(f"s_mul_i32 s46, s40, {16*1152}\ns_mul_i32 s47, s40, 18496\ns_add_u32 s47, s47, {WS_Z + 288*64}")
    A(f"s_mov_b32 s48, {f32bits(2.0/(576*2048))}\ns_mov_b32 s49, {f32bits(-1.4426950408889634)}")
    def loads(rnd):
        o = 100 + 20 * rnd
        A(f"v_add_u32 v2, {512*rnd}, v0")
        div36(A, o+12, o+13, 2, 5)
        rw, cc = o + 12, o + 13
        A(f"v_mov_b32 v7, 0x120\nv_cmp_le_u32 vcc, s43, v{cc}\ns_nop 1\nv_cndmask_b32 v6, 0, 1, vcc\nv_cmp_le_u32 vcc, s44, v{cc}\ns_nop 1\nv_addc_co_u32 v{o+14}, vcc, 0, v6, vcc")
        A(f"v_lshlrev_b32 v5, 4, v{cc}\nv_add_u32 v5, s42, v5\nv_mad_u32_u24 v5, v{o+14}, v7, v5")
        A(f"buffer_load_dwordx4 v[{o}:{o+3}], v5, s[{S_B2}:{S_B2+3}], 0 offen")
        A(f"v_mul_u32_u24 v6, 1152, v{rw}\nv_add_u32 v{o+15}, v5, v6")
        A(f"buffer_load_dwordx4 v[{o+4}:{o+7}], v{o+15}, s[{S_X}:{S_X+3}], s46 offen")
        A(f"v_lshlrev_b32 v6, 2, v{rw}\nbuffer_load_dword v{o+8}, v6, s[{S_WS}:{S_WS+3}], s47 offen sc0 sc1")
    loads(0)
    A(f"s_cmp_lg_u32 s{S_WAVE}, 4\ns_cbranch_scc1 L_f2a")
    A("v_subrev_u32 v0, 256, v0")
    loads(1)
    A("L_f2a:\ns_waitcnt lgkmcnt(0)\ns_barrier")
    st(A, stamp, 6)
    for rnd in range(2):
        o = 100 + 20 * rnd; rw, cc, nt = o + 12, o + 13, o + 14
        if rnd == 1: A(f"s_cmp_lg_u32 s{S_WAVE}, 4\ns_cbranch_scc1 L_f2e")
        A(f"v_mul_u32_u24 v6, {GTP}, v{rw}\nv_lshl_add_u32 v6, v{cc}, 5, v6\nv_lshl_add_u32 v6, v{nt}, 6, v6\nv_add_u32 v6, s45, v6\nv_add_u32 v6, {L_GT}, v6")
        A("ds_read_b128 v[32:35], v6\nds_read_b128 v[36:39], v6 offset:16")
        A(f"v_cvt_f32_u32 v6, v{cc}\nv_add_f32 v6, 0.5, v6\nv_mul_f32 v6, {1.0/9}, v6\nv_cvt_u32_f32 v6, v6\nv_mul_u32_u24 v7, 9, v6\nv_sub_u32 v7, v{cc}, v7")
        A(f"v_and_b32 v8, 1, v6\nv_mul_u32_u24 v9, 416, v{rw}\nv_lshl_add_u32 v9, v7, 5, v9\nv_mul_u32_u24 v8, {9216+96}, v8\nv_add3_u32 v9, v9, v8, {0}".replace(", 0", ", v8").replace("v_add3_u32 v9, v9, v8, v8", "v_add_u32 v9, v9, v8"))
        A(f"ds_read_b128 v[40:43], v9 offset:{pq_addr(0,0)}\nds_read_b128 v[44:47], v9 offset:{pq_addr(0,0)+16}\nds_read_b128 v[48:51], v9 offset:{pq_addr(1,0)}\nds_read_b128 v[52:55], v9 offset:{pq_addr(1,0)+16}")
        A("v_add_u32 v8, 1, v6\nv_and_b32 v8, 2, v8\nv_lshlrev_b32 v8, 30, v8\nv_xor_b32 v8, 1.0, v8")
        A("s_waitcnt vmcnt(0) lgkmcnt(0)")
        A(f"v_lshlrev_b32 v62, 16, v{o+8}\nv_mul_f32 v62, 0.5, v62")
        for e in range(8):
            bsrc = o + (e >> 1); xsrc = o + 4 + (e >> 1)
            un = (lambda d, s: f"v_lshlrev_b32 v{d}, 16, v{s}") if e % 2 == 0 else (lambda d, s: f"v_and_b32 v{d}, 0xffff0000, v{s}")
            A(un(10, bsrc))
            A(f"v_add_f32 v10, v{32+e}, v10\nv_mul_f32 v11, s49, v10\nv_exp_f32 v11, v11")
            A(f"v_fma_f32 v12, v{48+e}, v8, v{40+e}")
            A(("v_add_f32" if e % 2 == 0 else "v_sub_f32") + " v12, v12, v62")
            A("v_add_f32 v11, 1.0, v11\nv_rcp_f32 v11, v11\nv_mul_f32 v12, s48, v12")
            A(un(13, xsrc))
            A(f"v_mul_f32 v10, v10, v11\nv_fma_f32 v{32+e}, v12, v10, v13")
        for x in range(4): A(f"v_cvt_pk_bf16_f32 v{56+x}, v{32+2*x}, v{33+2*x}")
        A(f"buffer_store_dwordx4 v[56:59], v{o+15}, s[{S_OUT}:{S_OUT+3}], s46 offen")
    A("L_f2e:")
    A(f"s_or_b32 s40, s2, s{S_WAVE}\ns_cmp_lg_u32 s40, 0\ns_cbranch_scc1 L_noe\nv_mov_b32 v2, s{S_NONCE}\nv_mov_b32 v3, 0\ns_mov_b32 s41, {WS_E}\ns_mov_b64 exec, 1\nbuffer_store_dword v2, v3, s[{S_WS}:{S_WS+3}], s41 offen\ns_mov_b64 exec, -1\nL_noe:")
    if stamp:
        A(f"s_waitcnt vmcnt(0)\ns_memtime s[{STB+14}:{STB+15}]\ns_memrealtime s[74:75]\ns_waitcnt lgkmcnt(0)\ns_sub_u32 s74, s74, s94")
        for i in range(8): A(f"s_sub_u32 s{STB+2*i}, s{STB+2*i}, s92\nv_mov_b32 v{24+i}, s{STB+2*i}")
        A("v_mov_b32 v32, s74")
        A(f"s_lshl_b32 s46, s2, 9\ns_lshl_b32 s47, s{S_WAVE}, 6\ns_add_u32 s46, s46, s47\ns_add_u32 s46, s46, {WS_DBG}\nv_mov_b32 v40, 0\ns_mov_b64 exec, 1")
        A(f"buffer_store_dwordx4 v[24:27], v40, s[{S_WS}:{S_WS+3}], s46 offen\nbuffer_store_dwordx4 v[28:31], v40, s[{S_WS}:{S_WS+3}], s46 offen offset:16\nbuffer_store_dword v32, v40, s[{S_WS}:{S_WS+3}], s46 offen offset:32")
    A("s_endpgm")

def gen_mwave7(A, stamp):
    T = Asm(); G6.gen_mwave(T, False)
    txt = "\n".join(T.L)
    m = G6.gemm_stream(1)
    pre = txt[:txt.index("  s_barrier\n  ds_read_b128".replace("  ds_read_b128", "  v_add_u32 v2, s40, v60"))]
    A.L += pre.split("\n")
    A("s_barrier")
    st(A, stamp, 0)
    lines = []
    for k, (mm, v) in enumerate(m):
        if mm == "mark": cur = v
        if mm == "t" and v == "s_barrier" and (cur // 9) % 4 == 3: lines.append(("t", "s_waitcnt vmcnt(0)"))
        lines.append((mm, v))
    emit_loop(A, lines, "L_g1", start=4, period=36, count=8, total=324)
    st(A, stamp, 1)
    A("s_barrier")
    A(f"s_lshl_b32 s46, s31, 12\nv_add_u32 v243, s46, v{vB0}\nv_add_u32 v246, 32768, v243")
    for t in range(9):
        acc = ACC + 16 * t; o = 248
        for x in range(16): A(f"v_mul_f32_e64 v{acc+x}, v{acc+x}, |v{acc+x}|")
        for x in range(8): A(f"v_cvt_pk_bf16_f32 v{o+x}, v{acc+2*x}, v{acc+2*x+1}")
        for x in range(8): A(f"v_pk_max_i16 v{o+x}, v{o+x}, 0")
        for h in range(2):
            if t < 4: A(f"ds_write_b128 v243, v[{o+4*h}:{o+4*h+3}] offset:{t*8192+h*2048}")
            else: A(f"ds_write_b128 v246, v[{o+4*h}:{o+4*h+3}] offset:{(t-4)*8192+h*2048}")
        if t == 3: A("s_barrier")
    A(f"s_lshl_b32 s47, s2, 2\ns_add_u32 s47, s47, s{S_WAVE}\ns_mul_i32 s47, s47, 18432\ns_add_u32 s47, s47, {WS_PART}")
    A(f"s_lshl_b32 s40, s{S_K0}, 11\nv_add_u32 v{vB}, s40, v{vB0}")
    A("s_waitcnt lgkmcnt(0)\ns_barrier")
    A(f"s_cmp_lt_i32 s{S_XC}, 0\ns_cbranch_scc1 L_m_nx\ns_barrier\ns_barrier\ns_barrier\nL_m_nx:")
    st(A, stamp, 2)
    emit_loop(A, G6.gemm_stream(2), "L_g2", 0, 0, 1, 324)
    st(A, stamp, 3)
    A("s_barrier")
    A(f"s_lshl_b32 s40, s2, 7\ns_lshl_b32 s41, s{S_WAVE}, 2\ns_add_u32 s40, s40, s41\ns_add_u32 s40, s40, {WS_FLAG}\nv_mov_b32 v2, s{S_NONCE}\nv_mov_b32 v3, 0")
    A(f"s_waitcnt vmcnt(0)\ns_mov_b64 exec, 1\nbuffer_store_dword v2, v3, s[{S_WS}:{S_WS+3}], s40 offen sc0 sc1\ns_mov_b64 exec, -1")
    st(A, stamp, 4)
    gen_tail_f1(A, "m", 2, S_WAVE)
    st(A, stamp, 5)
    A("s_branch L_f2")

def gen_helper7(A, stamp):
    A("L_helper:")
    A(f"s_sub_u32 s{S_HW}, s{S_WAVE}, 4\nv_and_b32 v{VL}, 63, v0\nv_and_b32 v1, 255, v0\ns_mov_b32 s{S_RT2}, {f32bits(0.7071067811865476)}")
    A(f"s_cmp_ge_u32 s{S_HW}, 2\ns_cbranch_scc1 L_h_w0")
    G6.gen_loader_pre(A)
    A("s_branch L_h_c0\nL_h_w0:")
    A(f"s_sub_u32 s31, s{S_WAVE}, 6")
    A(f"s_lshr_b32 s40, s2, 3\ns_and_b32 s40, s40, 3\ns_lshl_b32 s40, s40, 1\ns_add_u32 s40, s40, s31\ns_min_u32 s40, s40, {CODE_PF7}-1\ns_lshl_b32 s40, s40, 13")
    A("s_barrier")
    A(f"s_getpc_b64 s[42:43]\ns_add_u32 s42, s42, main_entry@rel32@lo+4\ns_addc_u32 s43, s43, main_entry@rel32@hi+12\nv_lshlrev_b32 v2, 7, v{VL}\nv_add_u32 v2, s40, v2\nglobal_load_dword v5, v2, s[42:43]")
    A(f"s_cmp_ge_u32 s{S_J}, 5\ns_cbranch_scc1 L_nowt")
    G6.tw_dma(A)
    A("L_nowt:")
    G6.gen_wt_loads(A)
    A(f"s_mul_i32 s40, s2, 9248\ns_lshl_b32 s41, s31, 4\ns_add_u32 s40, s40, s41\ns_add_u32 s40, s40, {WS_WT}\nv_lshlrev_b32 v{VX}, 5, v{VL}")
    A("s_waitcnt vmcnt(0)")
    for q in range(5):
        for u3 in range(4): A(f"v_lshl_or_b32 v{64+4*q+u3}, v{36+u3*5+q}, 16, v{16+u3*5+q}")
        if q == 4: A("s_mov_b32 exec_lo, -1\ns_mov_b32 exec_hi, 1")
        A(f"buffer_store_dwordx4 v[{64+4*q}:{67+4*q}], v{VX}, s[{S_WS}:{S_WS+3}], s40 offen sc0 sc1\ns_add_u32 s40, s40, 2048")
    A("s_mov_b64 exec, -1\ns_nop 1")
    A("L_h_c0:")
    A("s_barrier")
    A(f"s_cmp_ge_u32 s{S_J}, 5\ns_cbranch_scc1 L_h_np0\ns_barrier\nL_h_np0:")
    def dma(gemm, tag):
        A(f"s_cbranch_vccz L_sk{tag}\ns_call_b64 s[62:63], L_ld{gemm}\nL_sk{tag}:".replace("s_cbranch_vccz", f"s_cmp_ge_u32 s{S_HW}, 2\ns_cbranch_scc1"))
    dma(1, "a")
    A("s_waitcnt vmcnt(9)\ns_barrier")
    bg = Asm(); FF.fft_setup(bg, R, 1, L_F, 56)
    bgl = bg.L + g_gen_lines()
    per = (len(bgl) + 30) // 31
    for s in range(36):
        if s == 33:
            A(f"s_cmp_ge_u32 s{S_HW}, 2\ns_cbranch_scc1 L_g2s"); G6.g2_setup(A, 0); A("L_g2s:")
        dma(1 if s < 33 else 2, f"b{s}")
        A.L += bgl[per * s: per * (s + 1)] if s < 31 else []
        if s == 2: A(f"s_cmp_lt_u32 s{S_HW}, 2\ns_cbranch_scc1 L_nv\ns_waitcnt vmcnt(0)\nL_nv:")
        if s == 4:
            A(f"s_cmp_lg_u32 s{S_HW}, 2\ns_cbranch_scc1 L_nb1"); bump_counter(A, 0, 253); A("L_nb1:")
        if s == 32:
            A(f"s_cmp_lg_u32 s{S_HW}, 2\ns_cbranch_scc1 L_np1"); poll_counter(A, "L_poll1", 0, 253); A("L_np1:")
        if s == 34:
            fft_loads(A, 2, R.POOL, 2)
            A(f"s_cmp_lt_i32 s{S_XC}, 0\ns_cbranch_scc1 L_nx1"); fft_loads(A, S_XC, XR2, 1, wload=False); A("s_waitcnt vmcnt(27)\ns_branch L_nx2\nL_nx1:\ns_waitcnt vmcnt(19)\nL_nx2:")
        else:
            A("s_waitcnt vmcnt(9)")
        A("s_barrier")
    st(A, stamp, 0)
    A(f"s_mov_b32 s61, s2")
    A("s_waitcnt vmcnt(0)")
    A("L_fft:")
    for a in range(8):
        p = R.POOL + 2 * a
        A(f"v_and_b32 v{p+1}, 0xffff0000, v{p}\nv_lshlrev_b32 v{p}, 16, v{p}")
    blocks, outs = FF.fft_column_blocks(A, R, S_RT2)
    for nm, b in blocks:
        if nm == "BAR": A("s_barrier")
        else:
            for line in b.L:
                if line.strip() == ";WAITW":
                    A("s_waitcnt vmcnt(0)")
                    for i in range(8): A(f"v_and_b32 v{R.WV+8+i}, 0xffff0000, v{R.WV+i}\nv_lshlrev_b32 v{R.WV+i}, 16, v{R.WV+i}")
                else: A.L.append(line)
            if nm == "f4":
                A(f"s_cmp_eq_u32 s61, s{S_XC}\ns_cbranch_scc1 L_nw2\ns_cmp_lt_i32 s{S_XC}, 0\ns_cbranch_scc1 L_nw2"); w_loads(A, S_XC); A("L_nw2:")
    A(f"s_lshl_b32 s56, s61, 6\ns_add_u32 s56, s56, {WS_Z}")
    for a in range(8):
        A(f"buffer_store_dword v{outs[a]}, v{R.GZ}, s[{S_WS}:{S_WS+3}], s56 offen sc0 sc1")
        if a < 7: A(f"s_add_u32 s56, s56, {16*18496}")
    A(f"s_cmp_eq_u32 s61, s{S_XC}\ns_cbranch_scc1 L_fftd\ns_cmp_lt_i32 s{S_XC}, 0\ns_cbranch_scc1 L_fftd")
    A(f"s_mov_b32 s61, s{S_XC}")
    for a in range(8): A(f"v_mov_b32 v{R.POOL+2*a}, v{XR2+a}")
    A("s_barrier\ns_branch L_fft\nL_fftd:")
    st(A, stamp, 1)
    def interval(tag, extra=None):
        dma(2, tag)
        if extra: extra()
        A("s_waitcnt vmcnt(9)\ns_barrier")
    def loop(n, tag):
        A(f"s_mov_b32 s45, {n}\nL_hl{tag}:"); interval(f"l{tag}"); A(f"s_sub_u32 s45, s45, 1\ns_cmp_lg_u32 s45, 0\ns_cbranch_scc1 L_hl{tag}")
    interval("c0"); interval("c1")
    interval("c2", lambda: A(f"s_cmp_lt_u32 s{S_HW}, 2\ns_cbranch_scc1 L_nv2\ns_waitcnt vmcnt(0)\nL_nv2:"))
    def b2():
        A(f"s_cmp_lg_u32 s{S_HW}, 2\ns_cbranch_scc1 L_nb2"); bump_counter(A, 16, 253); A("L_nb2:")
    interval("c3", b2)
    loop(5, "0")
    for grp in (1, 2):
        A(f"s_cmp_ge_u32 s{S_HW}, 2\ns_cbranch_scc1 L_g2s{grp}"); G6.g2_setup(A, grp); A(f"L_g2s{grp}:")
        loop(12 if grp == 1 else 11, str(grp))
    def p2():
        A(f"s_cmp_lg_u32 s{S_HW}, 2\ns_cbranch_scc1 L_np2"); poll_counter(A, "L_poll2", 16, 253); A("L_np2:")
    interval("d", p2)
    A(f"s_cmp_ge_u32 s{S_HW}, 2\ns_cbranch_scc1 L_nz")
    A(f"s_lshl_b32 s40, s{S_RB}, 2\ns_lshr_b32 s41, s{S_J}, 1\ns_add_u32 s40, s40, s41\ns_mul_i32 s40, s40, 18496\ns_add_u32 s40, s40, {WS_Z}\ns_lshl_b32 s41, s{S_HW}, 6\ns_add_u32 s40, s40, s41")
    A(f"v_lshrrev_b32 v2, 2, v{VL}\nv_lshlrev_b32 v2, 7, v2\nv_and_b32 v3, 3, v{VL}\nv_lshl_add_u32 v2, v3, 4, v2")
    for e in range(9):
        A(f"s_add_u32 m0, s50, {1024*e}\ns_add_u32 s41, s40, {2048*e}\nbuffer_load_dwordx4 v2, s[{S_WS}:{S_WS+3}], s41 offen sc0 sc1 lds")
    A("L_nz:\ns_waitcnt vmcnt(9)\ns_barrier")
    A(f"v_lshrrev_b32 v2, 5, v{VL}\nv_lshlrev_b32 v2, 3, v2\nv_bfe_u32 v3, v{VL}, 2, 2\nv_add_u32 v2, v2, v3\nv_lshlrev_b32 v2, 6, v2")
    A(f"v_bfe_u32 v3, v{VL}, 4, 1\nv_lshlrev_b32 v3, 5, v3\nv_and_b32 v4, 3, v{VL}\nv_lshlrev_b32 v4, 3, v4\nv_add3_u32 v2, v2, v3, v4")
    A(f"s_and_b32 s56, s{S_HW}, 1\ns_mul_i32 s56, s56, {RHALF}\nv_add_u32 v2, s56, v2\ns_lshr_b32 s57, s{S_HW}, 1")
    A("s_waitcnt vmcnt(0)\ns_barrier")
    st(A, stamp, 2)
    PA = 64
    for kap in range(9):
        b = 24 + 4 * kap
        A(f"ds_read_b64_tr_b16 v[{b}:{b+1}], v2 offset:{kap*1024}\nds_read_b64_tr_b16 v[{b+2}:{b+3}], v2 offset:{kap*1024+256}")
        if kap == 5: A("s_waitcnt lgkmcnt(4)")
    for kap in range(9):
        b = 24 + 4 * kap
        if kap == 0: A("s_waitcnt lgkmcnt(8)")
        if kap == 5: A("s_waitcnt lgkmcnt(0)")
        for t in range(3):
            g = GB + 4 * (9 * t + kap); acc = PA + 16 * t
            c = "0" if kap == 0 else f"v[{acc}:{acc+15}]"
            A(f"v_mfma_f32_32x32x16_bf16 v[{acc}:{acc+15}], v[{g}:{g+3}], v[{b}:{b+3}], {c}")
    A(f"v_and_b32 v2, 1, v{VL}\nv_cmp_eq_u32 vcc, 0, v2\nv_mov_b32 v3, -1.0\nv_mov_b32 v4, 1.0\nv_cndmask_b32 v3, v3, v4, vcc")
    A(f"v_bfe_u32 v4, v{VL}, 1, 4\nv_mul_u32_u24 v4, 416, v4\nv_mul_u32_u24 v5, 9216, v2\nv_add3_u32 v4, v4, v5, s56\nv_add_u32 v4, 9216, v4")
    A(f"v_lshrrev_b32 v5, 5, v{VL}\nv_lshlrev_b32 v5, 4, v5\ns_mul_i32 s40, s57, 192\nv_add_u32 v5, s40, v5")
    A("v_sub_u32 v6, 0x180, v5\nv_cndmask_b32 v5, v6, v5, vcc\nv_add_u32 v4, v4, v5")
    A("v_mov_b32 v5, -4\nv_mov_b32 v6, 4\nv_cndmask_b32 v5, v5, v6, vcc\ns_nop 3")
    for t in range(3):
        acc = PA + 16 * t
        for rr in range(8): A(f"v_cndmask_b32 v{8+rr}, v{acc+8+rr}, v{acc+rr}, vcc")
        for rr in range(8): A(f"v_mul_f32 v{16+rr}, v3, v{8+rr}")
        for rr in range(8): A(f"v_add_f32_dpp v{16+rr}, v{8+rr}, v{16+rr} quad_perm:[1,0,3,2] row_mask:0xf bank_mask:0xf")
        for rr in range(8): A(f"v_mad_i32_i24 v{8+rr}, v5, {16*t + 8*(rr>>2) + (rr&3)}, v4")
        for rr in range(8): A(f"ds_write_b32 v{8+rr}, v{16+rr}")
    st(A, stamp, 3)
    A("s_barrier")
    A(f"s_cmp_lt_u32 s{S_HW}, 2\ns_cbranch_scc1 L_f2")
    A(f"s_add_u32 s56, s{S_HW}, 6")
    gen_tail_f1(A, "h", 1, 56)
    A("s_branch L_f2")
    for gemm in (1, 2):
        A(f"L_ld{gemm}:"); G6.ld_stage(A, gemm); A("s_setpc_b64 s[62:63]")

CODE_PF7 = 5
def gen_kernel(name, stamp=False):
    A = Asm()
    A("main_entry:")
    if stamp: A("s_memtime s[92:93]\ns_memrealtime s[94:95]")
    A("s_cmp_ge_u32 s2, 256\ns_cbranch_scc1 L_exit")
    A("s_load_dwordx2 s[4:5], s[0:1], 0\ns_load_dwordx2 s[8:9], s[0:1], 32\ns_load_dwordx2 s[12:13], s[0:1], 48\ns_load_dwordx2 s[16:17], s[0:1], 80")
    A(f"s_load_dwordx2 s[20:21], s[0:1], 40\ns_load_dwordx2 s[32:33], s[0:1], 8\ns_load_dwordx2 s[36:37], s[0:1], 16")
    A(f"s_load_dwordx2 s[{S_OUT}:{S_OUT+1}], s[0:1], 64\ns_load_dwordx2 s[{S_B2}:{S_B2+1}], s[0:1], 56\ns_load_dwordx2 s[{S_DBGP}:{S_DBGP+1}], s[0:1], 72")
    A(f"v_lshrrev_b32 v1, 6, v0\ns_nop 0\nv_readfirstlane_b32 s{S_WAVE}, v1")
    A(f"s_mov_b32 s6, 2359296\ns_mov_b32 s7, 0x00020000\ns_mov_b32 s10, 5308416\ns_mov_b32 s11, 0x00020000\ns_mov_b32 s14, 5308416\ns_mov_b32 s15, 0x00020000")
    A(f"s_mov_b32 s18, {WS_SIZE}\ns_mov_b32 s19, 0x00020000\ns_mov_b32 s22, 9216\ns_mov_b32 s23, 0x00020000")
    A(f"s_mov_b32 s34, {2048*578}\ns_mov_b32 s35, 0x00020000\ns_mov_b32 s38, {2048*578}\ns_mov_b32 s39, 0x00020000")
    A(f"s_mov_b32 s{S_OUT+2}, 2359296\ns_mov_b32 s{S_OUT+3}, 0x00020000\ns_mov_b32 s{S_B2+2}, 1152\ns_mov_b32 s{S_B2+3}, 0x00020000")
    A(f"s_and_b32 s40, s2, 6\ns_bfe_u32 s41, s2, 0x10003\ns_add_u32 s{S_J}, s40, s41")
    A(f"s_and_b32 s40, s2, 1\ns_lshl_b32 s40, s40, 4\ns_lshr_b32 s41, s2, 4\ns_add_u32 s{S_RB}, s40, s41")
    A(f"s_and_b32 s40, s{S_RB}, 15\ns_cmp_ge_u32 s40, 9\ns_cselect_b32 s41, 9, 0\ns_sub_u32 s40, s40, s41\ns_lshl_b32 s{S_K0}, s40, 2")
    A(f"s_mul_i32 s40, s{S_RB}, 3\ns_add_u32 s40, s40, s{S_J}\ns_add_u32 s40, s40, 251\ns_cmp_lt_u32 s40, 289\ns_cselect_b32 s{S_XC}, s40, -1\ns_cmp_lt_u32 s{S_J}, 5\ns_cselect_b32 s{S_XC}, -1, s{S_XC}")
    A("s_waitcnt lgkmcnt(0)")
    A(f"s_load_dword s{S_NONCE}, s[16:17], {WS_E}")
    A(f"s_cmp_ge_u32 s{S_WAVE}, 4\ns_cbranch_scc1 L_helper0")
    gen_ln_loads(A)
    A(f"s_barrier\ns_waitcnt lgkmcnt(0)\ns_add_u32 s{S_NONCE}, s{S_NONCE}, 1")
    gen_ln(A, False)
    gen_mwave7(A, stamp)
    A(f"L_helper0:\ns_waitcnt lgkmcnt(0)\ns_add_u32 s{S_NONCE}, s{S_NONCE}, 1")
    gen_helper7(A, stamp)
    gen_tail_f2(A, stamp)
    A("L_exit:\ns_endpgm")
    return kernel_header(name) + A.text() + kernel_desc(name, 256, 100) + data_section()

if __name__ == "__main__":
    import sys
    stamp = len(sys.argv) > 1
    hdr = open("cdna_kernels/" + NAME + ".s.ref").read().split("; Override")[0]
    src = hdr + f"; @launch grid=(256,1,1) block=(512,1,1) lds={LDS_BYTES}\n" + '.amdgcn_target "amdgcn-amd-amdhsa--gfx950"\n' + gen_kernel(NAME + "_kernel", stamp)
    open("v7.s", "w").write(src)
```

```python
from asmlib import *
import gen6 as G
from gen6 import f32bits

class Pool:
    def __init__(self, base, n):
        self.free = [base + 2 * i for i in range(n)]
    def alloc(self): return self.free.pop(0)
    def release(self, r): self.free.append(r)

import re as _re
def _regs(tok):
    m = _re.fullmatch(r"-?v\[(\d+):(\d+)\]", tok)
    if m: return set(range(int(m.group(1)), int(m.group(2)) + 1))
    m = _re.fullmatch(r"-?v(\d+)", tok)
    if m: return {int(m.group(1))}
    return set()
def schedule(lines, lat=3):
    ins = []
    for l in lines:
        t = l.strip(); op, rest = t.split(" ", 1)
        toks = [x.strip() for x in _re.split(r",(?![^\[]*\])", rest.split(" op_sel")[0].split(" offset")[0])]
        if op.startswith("ds_write"): d, s_ = set(), set().union(*[_regs(x) for x in toks])
        else: d, s_ = _regs(toks[0]), set().union(*[_regs(x) for x in toks[1:]])
        ins.append((l, d, s_, op))
    n = len(ins); preds = [[] for _ in range(n)]
    for i in range(n):
        for j in range(i):
            raw = ins[j][1] & ins[i][2]; war = ins[j][2] & ins[i][1]; waw = ins[j][1] & ins[i][1]
            if raw: preds[i].append((j, lat))
            elif war or waw: preds[i].append((j, 1))
    pr = [0] * n
    for i in range(n - 1, -1, -1):
        for j, w in preds[i]: pr[j] = max(pr[j], pr[i] + w)
    done = {}; out = []; t = 0; rem = set(range(n))
    while rem:
        ready = [i for i in rem if all(j in done for j, _ in preds[i])]
        ok = [i for i in ready if all(done[j] + w <= t for j, w in preds[i])]
        pick = max(ok, key=lambda i: (pr[i], -i)) if ok else min(ready, key=lambda i: max(done[j] + w for j, w in preds[i]))
        done[pick] = t; out.append(ins[pick][0]); rem.remove(pick); t += 1
    return out
def schedule_block(L):
    out = []; run = []
    for l in L:
        t = l.strip()
        if t.startswith("v_") or t.startswith("ds_write"): run.append(l)
        else:
            if run: out += schedule(run); run = []
            out.append(l)
    if run: out += schedule(run)
    return out

class C:
    def __init__(self, pair, re=None, im=None):
        self.pair = pair
        self.re = re if re else (pair, 1)
        self.im = im if im else (pair + 1, 1)
    def muli(self, s):
        if s > 0: return C(self.pair, (self.im[0], -self.im[1]), self.re)
        return C(self.pair, self.im, (self.re[0], -self.re[1]))

def neg(r, s): return f"v{r}" if s > 0 else f"-v{r}"

class FFT:
    def __init__(self, A, pool, s_rt2):
        self.A, self.pool, self.k = A, pool, s_rt2
    def src(self, x, s=1):
        p = x.pair
        return (f"v[{p}:{p+1}]", x.re[0] - p, x.im[0] - p, int(s * x.re[1] < 0), int(s * x.im[1] < 0))
    def emit(self, op, dst, srcs):
        names = ", ".join(s[0] for s in srcs)
        l = lambda i: "[" + ",".join(str(s[i]) for s in srcs) + "]"
        self.A(f"{op} v[{dst}:{dst+1}], {names} op_sel:{l(1)} op_sel_hi:{l(2)} neg_lo:{l(3)} neg_hi:{l(4)}")
    def bfly(self, x, y, scaled=False):
        p, m = self.pool.alloc(), self.pool.alloc()
        if scaled:
            kk = (f"s[{self.k}:{self.k+1}]", 0, 1, 0, 0)
            self.emit("v_pk_fma_f32", p, [self.src(y), kk, self.src(x)])
            self.emit("v_pk_fma_f32", m, [self.src(y, -1), kk, self.src(x)])
        else:
            self.emit("v_pk_add_f32", p, [self.src(x), self.src(y)])
            self.emit("v_pk_add_f32", m, [self.src(x), self.src(y, -1)])
        self.pool.release(x.pair); self.pool.release(y.pair)
        return C(p), C(m)
    def rot45(self, x, s):
        p = self.pool.alloc()
        self.emit("v_pk_add_f32", p, [self.src(x), self.src(x.muli(s))])
        self.pool.release(x.pair)
        return C(p)
    def dft4(self, c, sg, odd_scaled=False):
        s0, s1 = self.bfly(c[0], c[2])
        s2, s3 = self.bfly(c[1], c[3])
        s3 = s3.muli(sg)
        o0, o2 = self.bfly(s0, s2, scaled=odd_scaled)
        o1, o3 = self.bfly(s1, s3, scaled=odd_scaled)
        return [o0, o1, o2, o3]
    def dft8(self, x, sg):
        a, b = [], []
        for i in range(4):
            p, m = self.bfly(x[i], x[i + 4]); a.append(p); b.append(m)
        b[1] = self.rot45(b[1], sg)
        b[2] = b[2].muli(sg)
        b[3] = self.rot45(b[3], sg).muli(sg)
        ea = self.dft4(a, sg)
        eb = self.dft4(b, sg, odd_scaled=True)
        return [ea[0], eb[0], ea[1], eb[1], ea[2], eb[2], ea[3], eb[3]]
    def twid(self, x, tw, sg):
        p = self.pool.alloc()
        t = f"v[{tw}:{tw+1}]"
        self.emit("v_pk_mul_f32", p, [self.src(x), (t, 0, 0, 0, 0)])
        self.emit("v_pk_fma_f32", p, [self.src(x.muli(sg)), (t, 1, 1, 0, 0), (f"v[{p}:{p+1}]", 0, 1, 0, 0)])
        self.pool.release(x.pair)
        return C(p)

class FFTRegs:
    def __init__(self, base):
        b = base
        self.TW = b; b += 42
        self.W1 = b; self.R1 = b + 1; b += 2
        self.W2 = b; b += 8
        self.R2 = b; b += 8
        self.R3 = b; b += 8
        self.GX = b; self.GZ = b + 1; b += 2
        self.WV = b; b += 8
        self.WP = b; b += 16
        self.T = b; b += 6
        self.POOL = b; b += 2 * 14
        self.end = b

def fft_setup(A, R, vt, L, s_tmp):
    T = R.T
    A(f"v_lshlrev_b32 v{R.W1}, 3, v{vt}\nv_add_u32 v{R.W1}, {L}, v{R.W1}")
    A(f"v_lshrrev_b32 v{T}, 5, v{vt}\nv_lshlrev_b32 v{T}, 11, v{T}\nv_add_u32 v{T}, {L}, v{T}")
    A(f"v_and_b32 v{T+1}, 31, v{vt}\nv_lshlrev_b32 v{T+1}, 3, v{T+1}\nv_add_u32 v{R.R1}, v{T}, v{T+1}")
    for p2 in range(8):
        A(f"v_xor_b32 v{R.W2+p2}, {32*p2}, v{R.R1}")
    A(f"v_bfe_u32 v{T+2}, v{vt}, 2, 3\nv_mul_u32_u24 v{T+3}, 288, v{T+2}\nv_and_b32 v{T+4}, 3, v{vt}\nv_lshlrev_b32 v{T+5}, 3, v{T+4}\nv_add3_u32 v{T+3}, v{T}, v{T+3}, v{T+5}")
    for c in range(8):
        A(f"v_xor_b32 v{R.R2+c}, {32*c}, v{T+3}")
    A(f"v_lshlrev_b32 v{T+3}, 8, v{T+2}\nv_add_u32 v{T+3}, v{T}, v{T+3}")
    A(f"v_lshlrev_b32 v{T+2}, 5, v{T+2}\nv_lshlrev_b32 v{T+5}, 6, v{T+4}\nv_xor_b32 v{T+2}, v{T+2}, v{T+5}\nv_add_u32 v{T+3}, v{T+3}, v{T+2}")
    for e0 in range(4):
        A(f"v_add_u32 v{T+5}, {e0}, v{T+4}\nv_and_b32 v{T+5}, 3, v{T+5}\nv_lshl_add_u32 v{R.R3+e0}, v{T+5}, 3, v{T+3}")
        A(f"v_xor_b32 v{R.R3+4+e0}, 32, v{R.R3+e0}")
    for lvl, (mask, n) in enumerate([(255, 2048), (31, 256), (3, 32)]):
        A(f"v_and_b32 v{T}, {mask}, v{vt}\nv_cvt_f32_u32 v{T}, v{T}")
        for p in range(1, 8):
            tw = R.TW + 14 * lvl + 2 * (p - 1)
            A(f"v_mul_f32 v{T+1}, {p/n}, v{T}\nv_cos_f32 v{tw}, v{T+1}\nv_sin_f32 v{tw+1}, v{T+1}")
    A(f"v_lshlrev_b32 v{R.GX}, 3, v{vt}")
    A(f"v_lshrrev_b32 v{T}, 4, v{vt}\nv_mul_u32_u24 v{T}, 18496, v{T}\nv_and_b32 v{T+1}, 15, v{vt}\nv_lshl_add_u32 v{R.GZ}, v{T+1}, 2, v{T}")

def fft_column_blocks(A_unused, R, s_rt2):
    blocks = []
    pool = Pool(R.POOL, 14)
    x = [C(pool.alloc()) for _ in range(8)]
    def blk(name):
        a = Asm(); blocks.append((name, a)); return a
    def wr(A, addr, off, v):
        assert v.re == (v.pair, 1) and v.im == (v.pair + 1, 1)
        A(f"ds_write_b64 v{addr}, v[{v.pair}:{v.pair+1}] offset:{off}"); pool.release(v.pair)
    def rd(A, addr, off):
        p = pool.alloc(); A(f"ds_read_b64 v[{p}:{p+1}], v{addr} offset:{off}"); return C(p)
    TW = lambda lvl, p: R.TW + 14 * lvl + 2 * (p - 1)
    A = blk("f1"); F = FFT(A, pool, s_rt2)
    y = F.dft8(x, -1)
    for p in range(8):
        v = y[p] if p == 0 else F.twid(y[p], TW(0, p), -1)
        wr(A, R.W1, 2048 * p, v)
    A("s_waitcnt lgkmcnt(0)")
    blk("BAR")
    A = blk("f2"); F = FFT(A, pool, s_rt2)
    x = [rd(A, R.R1, 256 * b) for b in range(8)]
    A("s_waitcnt lgkmcnt(0)")
    y = F.dft8(x, -1)
    for p in range(8):
        v = y[p] if p == 0 else F.twid(y[p], TW(1, p), -1)
        wr(A, R.W2 + p, 256 * p, v)
    A = blk("f3"); F = FFT(A, pool, s_rt2)
    x = [rd(A, R.R2 + c, 0) for c in range(8)]
    A("s_waitcnt lgkmcnt(0)")
    y = F.dft8(x, -1)
    for p in range(8):
        v = y[p] if p == 0 else F.twid(y[p], TW(2, p), -1)
        wr(A, R.R2 + p, 0, v)
    A = blk("f4"); F = FFT(A, pool, s_rt2)
    x = [rd(A, R.R3 + i, 0) for i in range(8)]
    A("s_waitcnt lgkmcnt(0)")
    A(";WAITW")
    for h in range(2):
        y = F.dft4(x[4*h:4*h+4], -1)
        z = []
        for u in range(4):
            i = 4 * h + u
            z.append(F.twid(y[u], R.WP + 2 * i, +1))
        y = F.dft4(z, +1)
        for e in range(4): wr(A, R.R3 + 4 * h + e, 0, y[e])
    A = blk("i3"); F = FFT(A, pool, s_rt2)
    x = [rd(A, R.R2 + p, 0) for p in range(8)]
    A("s_waitcnt lgkmcnt(0)")
    x = [x[0]] + [F.twid(x[p], TW(2, p), +1) for p in range(1, 8)]
    y = F.dft8(x, +1)
    for c in range(8): wr(A, R.R2 + c, 0, y[c])
    A = blk("i2"); F = FFT(A, pool, s_rt2)
    x = [rd(A, R.W2 + p, 256 * p) for p in range(8)]
    A("s_waitcnt lgkmcnt(0)")
    x = [x[0]] + [F.twid(x[p], TW(1, p), +1) for p in range(1, 8)]
    y = F.dft8(x, +1)
    for b in range(8): wr(A, R.R1, 256 * b, y[b])
    A("s_waitcnt lgkmcnt(0)")
    blk("BAR")
    A = blk("i1"); F = FFT(A, pool, s_rt2)
    x = [rd(A, R.W1, 2048 * p) for p in range(8)]
    A("s_waitcnt lgkmcnt(0)")
    x = [x[0]] + [F.twid(x[p], TW(0, p), +1) for p in range(1, 8)]
    y = F.dft8(x, +1)
    outs = []
    for a in range(8):
        A(f"v_cvt_pk_bf16_f32 v{y[a].pair}, v{y[a].pair}, v{y[a].pair+1}")
        outs.append(y[a].pair)
    for _, a_ in blocks: a_.L = schedule_block(a_.L)
    return blocks, outs

def x1_addr(A, s_col, s_dst, s_t):
    t, k = s_t, s_t + 1
    A(f"s_mov_b32 s{t}, 0\ns_mov_b32 s{k}, s{s_col}")
    A(f"s_sub_u32 s{t+2}, 144, s{s_col}\ns_cmp_gt_u32 s{s_col}, 72\ns_cselect_b32 s{t}, 3, s{t}\ns_cselect_b32 s{k}, s{t+2}, s{k}")
    A(f"s_sub_u32 s{t+2}, s{s_col}, 144\ns_cmp_ge_u32 s{s_col}, 144\ns_cselect_b32 s{t}, 2, s{t}\ns_cselect_b32 s{k}, s{t+2}, s{k}")
    A(f"s_sub_u32 s{t+2}, 288, s{s_col}\ns_cmp_ge_u32 s{s_col}, 216\ns_cselect_b32 s{t}, 1, s{t}\ns_cselect_b32 s{k}, s{t+2}, s{k}")
    A(f"s_mul_i32 s{t}, s{t}, 20\ns_lshr_b32 s{t+2}, s{k}, 2\ns_add_u32 s{t}, s{t}, s{t+2}\ns_lshl_b32 s{t}, s{t}, 15\ns_and_b32 s{k}, s{k}, 3\ns_lshl_b32 s{k}, s{k}, 2")
    A(f"s_add_u32 s{s_dst}, s{t}, s{k}\ns_add_u32 s{s_dst}, s{s_dst}, {G.WS_X1}")

def gen_fft_kernel(name):
    A = Asm()
    R = FFTRegs(2)
    A(f"s_cmp_ge_u32 s2, 289\ns_cbranch_scc1 L_fft_exit")
    A("s_load_dwordx2 s[4:5], s[0:1], 8\ns_load_dwordx2 s[8:9], s[0:1], 16\ns_load_dwordx2 s[16:17], s[0:1], 80")
    A(f"s_mov_b32 s6, {2048*578}\ns_mov_b32 s7, 0x00020000\ns_mov_b32 s10, {2048*578}\ns_mov_b32 s11, 0x00020000\ns_mov_b32 s18, {G.WS_SIZE}\ns_mov_b32 s19, 0x00020000")
    A(f"s_mov_b32 s28, {f32bits(0.7071067811865476)}\ns_mov_b32 s29, s28")
    x1_addr(A, 2, 21, 24)
    A(f"v_lshlrev_b32 v{R.GX}, 4, v0")
    A("s_waitcnt lgkmcnt(0)")
    for a in range(8):
        p = R.POOL + 2 * a
        A(f"buffer_load_dword v{p}, v{R.GX}, s[16:19], s21 offen\ns_add_u32 s21, s21, 4096")
    A(f"v_mul_u32_u24 v1, 9248, v0\ns_lshl_b32 s22, s2, 5\ns_add_u32 s22, s22, {G.WS_WT}")
    A(f"buffer_load_dwordx4 v[{R.WV}:{R.WV+3}], v1, s[16:19], s22 offen\nbuffer_load_dwordx4 v[{R.WV+4}:{R.WV+7}], v1, s[16:19], s22 offen offset:16")
    fft_setup(A, R, 0, 0, 21)
    blocks, outs = fft_column_blocks(A, R, 28)
    A("s_waitcnt vmcnt(2)")
    for a in range(8):
        p = R.POOL + 2 * a
        A(f"v_and_b32 v{p+1}, 0xffff0000, v{p}\nv_lshlrev_b32 v{p}, 16, v{p}")
    for nm, b in blocks:
        if nm == "BAR": A("s_barrier")
        else:
            for line in b.L:
                if line.strip() == ";WAITW":
                    A("s_waitcnt vmcnt(0)")
                    for i in range(8): A(f"v_and_b32 v{R.WP+2*i+1}, 0xffff0000, v{R.WV+i}\nv_lshlrev_b32 v{R.WP+2*i}, 16, v{R.WV+i}")
                else: A.L.append(line)
    A(f"s_lshl_b32 s21, s2, 6\ns_add_u32 s21, s21, {G.WS_Z}")
    for a in range(8):
        A(f"buffer_store_dword v{outs[a]}, v{R.GZ}, s[16:19], s21 offen")
        if a < 7: A(f"s_add_u32 s21, s21, {16*18496}")
    A("L_fft_exit:\ns_endpgm")
    return kernel_header(name) + A.text() + kernel_desc(name, R.end, 32)

if __name__ == "__main__":
    src = f"; @launch grid=(289,1,1) block=(256,1,1) lds=16384\n" + '.amdgcn_target "amdgcn-amd-amdhsa--gfx950"\n' + gen_fft_kernel(NAME + "_kernel")
    open("fft_test.s", "w").write(src)
```

```python
from asmlib import *
import gen6 as G6
from gen6 import *
import gen_fft12 as FF

S_OUT = 64
S_B2 = 68
S_DBGP = 72
S_HW, S_XC, S_RT2 = 30, 28, 96
R = FF.FFTRegs(2)
GB = 132
XR2 = 248
SPIN_MAX = 100000
L_GT = L_H
GTP = 1296
def pq_addr(par, typ): return par * RHALF + 9216 + typ * 9216
STB = 76
def st(A, stamp, n):
    if stamp: A(f"s_memtime s[{STB+2*n}:{STB+1+2*n}]")

WS_AF = 0x70000
def poll_counter(A, name, which, vt):
    A(f"v_lshlrev_b32 v{vt}, 4, v{VL}\ns_mov_b32 s55, 0\ns_mov_b32 s56, {WS_AF + 1024*which}")
    A(f"{name}:\nbuffer_load_dwordx4 v[{vt+2}:{vt+5}], v{vt}, s[{S_WS}:{S_WS+3}], s56 offen sc0 sc1\ns_waitcnt vmcnt(0)")
    A(f"v_xor_b32 v{vt+2}, s{S_NONCE}, v{vt+2}\nv_xor_b32 v{vt+3}, s{S_NONCE}, v{vt+3}\nv_xor_b32 v{vt+4}, s{S_NONCE}, v{vt+4}\nv_xor_b32 v{vt+5}, s{S_NONCE}, v{vt+5}")
    A(f"v_or_b32 v{vt+2}, v{vt+2}, v{vt+3}\nv_or3_b32 v{vt+2}, v{vt+2}, v{vt+4}, v{vt+5}")
    A(f"v_cmp_ne_u32 vcc, 0, v{vt+2}\ns_add_u32 s55, s55, 1\ns_cmp_gt_u32 s55, {SPIN_MAX}\ns_cbranch_scc1 {name}_ok\ns_cmp_eq_u64 vcc, 0\ns_cbranch_scc1 {name}_ok\ns_sleep 4\ns_branch {name}\n{name}_ok:")
def bump_counter(A, which, vt):
    A(f"s_lshl_b32 s55, s2, 2\ns_add_u32 s55, s55, {WS_AF + 1024*which}\nv_mov_b32 v{vt}, 0\nv_mov_b32 v{vt+1}, s{S_NONCE}\ns_mov_b64 exec, 1")
    A(f"buffer_store_dword v{vt+1}, v{vt}, s[{S_WS}:{S_WS+3}], s55 offen sc0 sc1\ns_mov_b64 exec, -1")

def gt_reg(t, kap): return (132 + 36 * t if t < 3 else 60 + 36 * (t - 3)) + 4 * kap
def g_gen_lines(tiles, T):
    A = Asm(); V = T + 8
    A(f"s_and_b32 s56, s{S_J}, 1\ns_mul_i32 s56, s56, 72")
    A(f"v_and_b32 v{T}, 15, v{VL}\nv_add_u32 v{T}, s56, v{T}\nv_cvt_f32_u32 v{T}, v{T}")
    A(f"v_lshrrev_b32 v{T+1}, 5, v{VL}\nv_lshlrev_b32 v{T+1}, 4, v{T+1}\nv_add_u32 v{T+1}, s31, v{T+1}\nv_cvt_f32_u32 v{T+1}, v{T+1}")
    A(f"v_bfe_u32 v{T+2}, v{VL}, 4, 1\nv_cvt_f32_u32 v{T+2}, v{T+2}\nv_mul_f32 v{T+2}, 0.25, v{T+2}")
    for t in tiles:
        A(f"v_add_f32 v{T+3}, {16.0*t}, v{T}\nv_mul_f32 v{T+3}, {1.0/576}, v{T+3}\nv_fma_f32 v{T+4}, v{T+3}, v{T+1}, v{T+2}")
        A(f"v_mul_f32 v{T+6}, 32.0, v{T+3}\nv_cos_f32 v{T+6}, v{T+6}")
        for i in range(8): A(f"v_fmamk_f32 v{V+i}, v{T+3}, {f32bits(float(2*i))}, v{T+4}\nv_fmamk_f32 v{V+8+i}, v{T+3}, {f32bits(float(2*i-32))}, v{T+4}")
        A(f"v_add_f32 v{T+6}, v{T+6}, v{T+6}")
        for i in range(16): A(f"v_cos_f32 v{V+i}, v{V+i}")
        for kap in range(9):
            g = gt_reg(t, kap); cur = V + 8 * (kap % 2); prv = V + 8 * ((kap + 1) % 2)
            if kap == 0:
                A(f"v_cmp_eq_f32 vcc, 0, v{T+1}\nv_mul_f32 v{T+5}, 0.5, v{cur}\ns_nop 0\nv_cndmask_b32 v{T+5}, v{cur}, v{T+5}, vcc")
                A(f"v_cvt_pk_bf16_f32 v{g}, v{T+5}, v{cur+1}")
            else: A(f"v_cvt_pk_bf16_f32 v{g}, v{cur}, v{cur+1}")
            for x in range(1, 4): A(f"v_cvt_pk_bf16_f32 v{g+x}, v{cur+2*x}, v{cur+1+2*x}")
            if kap < 8:
                for i in range(8): A(f"v_fma_f32 v{prv+i}, v{T+6}, v{cur+i}, -v{prv+i}")
    return A.L
def slice_bars(lines, nbar, wsl):
    nb = 0; run = 0; out = []; hold = False
    for l in lines:
        t = l.strip()
        if t == ";BAR": out.append("  s_barrier"); nb += 1; run = 0; continue
        if t == ";NOBAR": hold = True; continue
        if t == ";OK": hold = False; continue
        out.append(l); run += 2 if "v_cos" in t or "v_sin" in t else (8 if "mfma" in t else 1)
        if run >= wsl and not hold:
            out.append("  s_barrier"); nb += 1; run = 0
    assert nb <= nbar, nb
    print("slice: used", nb, "of", nbar)
    return out + ["  s_barrier"] * (nbar - nb)

def slot_decode(A, s_slot, s_x1, s_col):
    A(f"s_mov_b32 s56, 0\ns_mov_b32 s57, s{s_slot}")
    for ty, base in ((1, 76), (2, 152), (3, 224)):
        A(f"s_sub_u32 s58, s{s_slot}, {base}\ns_cmp_ge_u32 s{s_slot}, {base}\ns_cselect_b32 s56, {ty}, s56\ns_cselect_b32 s57, s58, s57")
    A("s_min_u32 s57, s57, 72")
    A("s_cmp_eq_u32 s56, 3\ns_cselect_b32 s58, 1, 0\ns_max_u32 s57, s57, s58")
    A(f"s_mov_b32 s{s_col}, s57\ns_sub_u32 s58, 288, s57\ns_cmp_eq_u32 s56, 1\ns_cselect_b32 s{s_col}, s58, s{s_col}")
    A(f"s_add_u32 s58, s57, 144\ns_cmp_eq_u32 s56, 2\ns_cselect_b32 s{s_col}, s58, s{s_col}\ns_sub_u32 s58, 144, s57\ns_cmp_eq_u32 s56, 3\ns_cselect_b32 s{s_col}, s58, s{s_col}")
    A(f"s_mul_i32 s58, s56, 20\ns_lshr_b32 s59, s57, 2\ns_add_u32 s58, s58, s59\ns_lshl_b32 s58, s58, 15\ns_and_b32 s59, s57, 3\ns_lshl_b32 s59, s59, 2\ns_add_u32 s58, s58, s59\ns_add_u32 s{s_x1}, s58, {WS_X1}")
def fft_loads(A, s_x1, xdst, stride):
    A(f"v_lshlrev_b32 v{R.GX}, 4, v1\ns_mov_b32 s56, s{s_x1}")
    for a in range(8): A(f"buffer_load_dword v{xdst+stride*a}, v{R.GX}, s[{S_WS}:{S_WS+3}], s56 offen\ns_add_u32 s56, s56, 4096")
def w_loads(A, s_col):
    A(f"v_mul_u32_u24 v{R.T}, 9248, v1\ns_lshl_b32 s56, s{s_col}, 5\ns_add_u32 s56, s56, {WS_WT}")
    A(f"buffer_load_dwordx4 v[{R.WV}:{R.WV+3}], v{R.T}, s[{S_WS}:{S_WS+3}], s56 offen\nbuffer_load_dwordx4 v[{R.WV+4}:{R.WV+7}], v{R.T}, s[{S_WS}:{S_WS+3}], s56 offen offset:16")

def dc_sel(A, s0, vals):
    A(f"s_and_b32 s55, s{S_J}, 1\ns_cmp_eq_u32 s55, 0")
    for i, (a, b) in enumerate(vals): A(f"s_cselect_b32 s{s0+i}, {a}, {b}")

def gen_tail_f1(A, tag, nitems, s_item):
    A(f"s_and_b32 s40, s{S_RB}, 15\ns_lshl_b32 s40, s40, 4\ns_lshr_b32 s41, s{S_RB}, 4\ns_add_u32 s40, s40, s41")
    A(f"v_bfe_u32 v2, v240, 1, 1\nv_lshlrev_b32 v2, 3, v2\nv_bfe_u32 v3, v240, 2, 2\nv_lshl_add_u32 v2, v3, 1, v2\nv_add_u32 v2, s40, v2\nv_lshlrev_b32 v2, 7, v2")
    A(f"v_and_b32 v3, 1, v240\nv_lshl_add_u32 v2, v3, 3, v2\ns_lshr_b32 s41, s{S_J}, 2\ns_lshl_b32 s42, s41, 2\ns_add_u32 s42, s42, {WS_FLAG}")
    A(f"s_mul_i32 s40, s40, 73728\ns_mul_i32 s41, s41, 18432\ns_add_u32 s40, s40, s41\ns_add_u32 s43, s40, {WS_PART}")
    dc_sel(A, 44, [(0, 4), (5, 10), (15, 99)])
    for n in range(nitems):
        t = 4 + 2 * n
        A(f"s_lshl_b32 s47, s{s_item}, 1\ns_add_u32 s47, s47, {8*n}\nv_lshrrev_b32 v8, 5, v240\nv_add_u32 v8, s47, v8")
        A(f"v_add_u32 v9, s44, v8\nv_cmp_le_u32 vcc, s45, v8\ns_nop 1\nv_cndmask_b32 v10, 0, 8, vcc\nv_add_u32 v9, v9, v10\nv_cmp_le_u32 vcc, s46, v8\ns_nop 1\nv_cndmask_b32 v10, 0, 8, vcc\nv_add_u32 v9, v9, v10")
        A(f"v_bfe_u32 v10, v9, 1, 1\nv_mul_u32_u24 v10, 36864, v10\nv_lshrrev_b32 v11, 2, v9\nv_lshl_add_u32 v10, v11, 11, v10\nv_and_b32 v11, 1, v9\nv_lshl_add_u32 v10, v11, 10, v10")
        A(f"v_bfe_u32 v11, v240, 4, 1\nv_lshl_add_u32 v10, v11, 9, v10\nv_and_b32 v12, 15, v240\nv_lshl_add_u32 v10, v12, 4, v10\ns_bfe_u32 s47, s{S_J}, 0x10001\ns_lshl_b32 s47, s47, 8\nv_add_u32 v{t}, s47, v10")
        A(f"v_mul_u32_u24 v12, {GTP}, v12\nv_lshl_add_u32 v12, v8, 6, v12\nv_lshl_add_u32 v12, v11, 4, v12\nv_add_u32 v{t+1}, {L_GT}, v12")
    A("s_mov_b32 s55, 0")
    A(f"L_pf{tag}:\nbuffer_load_dword v3, v2, s[{S_WS}:{S_WS+3}], s42 offen sc0 sc1\ns_waitcnt vmcnt(0)")
    A(f"v_cmp_ne_u32 vcc, s{S_NONCE}, v3\ns_add_u32 s55, s55, 1\ns_cmp_gt_u32 s55, {SPIN_MAX}\ns_cbranch_scc1 L_pf{tag}_ok\ns_cmp_eq_u64 vcc, 0\ns_cbranch_scc1 L_pf{tag}_ok\ns_sleep 2\ns_branch L_pf{tag}\nL_pf{tag}_ok:")
    for n in range(nitems):
        for jp in range(8):
            dw = (jp & 1) * 8 + (jp >> 1) * 2
            A(f"s_add_u32 s47, s43, {dw*73728}\nbuffer_load_dwordx4 v[{24+32*n+4*jp}:{27+32*n+4*jp}], v{4+2*n}, s[{S_WS}:{S_WS+3}], s47 offen sc0 sc1")
    for n in range(nitems):
        for jp in range(8):
            A(f"s_waitcnt vmcnt({8*(nitems-1-n) + 7-jp})")
            for x in range(4):
                src = 24 + 32 * n + 4 * jp + x
                if jp == 0: A(f"v_lshlrev_b32 v{8+2*x}, 16, v{src}\nv_and_b32 v{9+2*x}, 0xffff0000, v{src}")
                else: A(f"v_lshlrev_b32 v16, 16, v{src}\nv_and_b32 v17, 0xffff0000, v{src}\nv_pk_add_f32 v[{8+2*x}:{9+2*x}], v[{8+2*x}:{9+2*x}], v[16:17]")
        A(f"ds_write_b128 v{5+2*n}, v[8:11]\nds_write_b128 v{5+2*n}, v[12:15] offset:32")

def gen_tail_f2(A, stamp):
    A("L_f2:")
    dc_sel(A, 42, [(0, 144), (9, 18), (27, 99), (0, 32)])
    A(f"s_lshl_b32 s40, s{S_RB}, 2\ns_lshr_b32 s41, s{S_J}, 1\ns_add_u32 s40, s40, s41")
    A(f"s_mul_i32 s46, s40, {16*1152}\ns_mul_i32 s47, s40, 18496\ns_add_u32 s47, s47, {WS_Z + 288*64}")
    A(f"s_mov_b32 s48, {f32bits(2.0/(576*2048))}\ns_mov_b32 s49, {f32bits(-1.4426950408889634)}")
    def loads(rnd):
        o = 100 + 20 * rnd
        A(f"v_add_u32 v2, {512*rnd}, v0")
        div36(A, o+12, o+13, 2, 5)
        rw, cc = o + 12, o + 13
        A(f"v_mov_b32 v7, 0x120\nv_cmp_le_u32 vcc, s43, v{cc}\ns_nop 1\nv_cndmask_b32 v6, 0, 1, vcc\nv_cmp_le_u32 vcc, s44, v{cc}\ns_nop 1\nv_addc_co_u32 v{o+14}, vcc, 0, v6, vcc")
        A(f"v_lshlrev_b32 v5, 4, v{cc}\nv_add_u32 v5, s42, v5\nv_mad_u32_u24 v5, v{o+14}, v7, v5")
        A(f"buffer_load_dwordx4 v[{o}:{o+3}], v5, s[{S_B2}:{S_B2+3}], 0 offen")
        A(f"v_mul_u32_u24 v6, 1152, v{rw}\nv_add_u32 v{o+15}, v5, v6")
        A(f"buffer_load_dwordx4 v[{o+4}:{o+7}], v{o+15}, s[{S_X}:{S_X+3}], s46 offen")
        A(f"v_lshlrev_b32 v6, 2, v{rw}\nbuffer_load_dword v{o+8}, v6, s[{S_WS}:{S_WS+3}], s47 offen sc0 sc1")
    loads(0)
    A(f"s_cmp_lg_u32 s{S_WAVE}, 4\ns_cbranch_scc1 L_f2a")
    A("v_subrev_u32 v0, 256, v0")
    loads(1)
    A("L_f2a:\ns_waitcnt lgkmcnt(0)\ns_barrier")
    st(A, stamp, 6)
    for rnd in range(2):
        o = 100 + 20 * rnd; rw, cc, nt = o + 12, o + 13, o + 14
        if rnd == 1: A(f"s_cmp_lg_u32 s{S_WAVE}, 4\ns_cbranch_scc1 L_f2e")
        A(f"v_mul_u32_u24 v6, {GTP}, v{rw}\nv_lshl_add_u32 v6, v{cc}, 5, v6\nv_lshl_add_u32 v6, v{nt}, 6, v6\nv_add_u32 v6, s45, v6\nv_add_u32 v6, {L_GT}, v6")
        A("ds_read_b128 v[32:35], v6\nds_read_b128 v[36:39], v6 offset:16")
        A(f"v_cvt_f32_u32 v6, v{cc}\nv_add_f32 v6, 0.5, v6\nv_mul_f32 v6, {1.0/9}, v6\nv_cvt_u32_f32 v6, v6\nv_mul_u32_u24 v7, 9, v6\nv_sub_u32 v7, v{cc}, v7")
        A(f"v_and_b32 v8, 1, v6\nv_mul_u32_u24 v9, 416, v{rw}\nv_lshl_add_u32 v9, v7, 5, v9\nv_mul_u32_u24 v8, {9216+96}, v8\nv_add3_u32 v9, v9, v8, {0}".replace(", 0", ", v8").replace("v_add3_u32 v9, v9, v8, v8", "v_add_u32 v9, v9, v8"))
        A(f"ds_read_b128 v[40:43], v9 offset:{pq_addr(0,0)}\nds_read_b128 v[44:47], v9 offset:{pq_addr(0,0)+16}\nds_read_b128 v[48:51], v9 offset:{pq_addr(1,0)}\nds_read_b128 v[52:55], v9 offset:{pq_addr(1,0)+16}")
        A("v_add_u32 v8, 1, v6\nv_and_b32 v8, 2, v8\nv_lshlrev_b32 v8, 30, v8\nv_xor_b32 v8, 1.0, v8")
        A("s_waitcnt vmcnt(0) lgkmcnt(0)")
        A(f"v_lshlrev_b32 v62, 16, v{o+8}\nv_mul_f32 v62, 0.5, v62")
        for e in range(8):
            bsrc = o + (e >> 1); xsrc = o + 4 + (e >> 1)
            un = (lambda d, s: f"v_lshlrev_b32 v{d}, 16, v{s}") if e % 2 == 0 else (lambda d, s: f"v_and_b32 v{d}, 0xffff0000, v{s}")
            A(un(10, bsrc))
            A(f"v_add_f32 v10, v{32+e}, v10\nv_mul_f32 v11, s49, v10\nv_exp_f32 v11, v11")
            A(f"v_fma_f32 v12, v{48+e}, v8, v{40+e}")
            A(("v_add_f32" if e % 2 == 0 else "v_sub_f32") + " v12, v12, v62")
            A("v_add_f32 v11, 1.0, v11\nv_rcp_f32 v11, v11\nv_mul_f32 v12, s48, v12")
            A(un(13, xsrc))
            A(f"v_mul_f32 v10, v10, v11\nv_fma_f32 v{32+e}, v12, v10, v13")
        for x in range(4): A(f"v_cvt_pk_bf16_f32 v{56+x}, v{32+2*x}, v{33+2*x}")
        A(f"buffer_store_dwordx4 v[56:59], v{o+15}, s[{S_OUT}:{S_OUT+3}], s46 offen")
    A("L_f2e:")
    A(f"s_or_b32 s40, s2, s{S_WAVE}\ns_cmp_lg_u32 s40, 0\ns_cbranch_scc1 L_noe\nv_mov_b32 v2, s{S_NONCE}\nv_mov_b32 v3, 0\ns_mov_b32 s41, {WS_E}\ns_mov_b64 exec, 1\nbuffer_store_dword v2, v3, s[{S_WS}:{S_WS+3}], s41 offen\ns_mov_b64 exec, -1\nL_noe:")
    if stamp:
        A(f"s_waitcnt vmcnt(0)\ns_memtime s[{STB+14}:{STB+15}]\ns_memrealtime s[74:75]\ns_waitcnt lgkmcnt(0)\ns_sub_u32 s74, s74, s94")
        for i in range(8): A(f"s_sub_u32 s{STB+2*i}, s{STB+2*i}, s92\nv_mov_b32 v{24+i}, s{STB+2*i}")
        A("v_mov_b32 v32, s74")
        A(f"s_lshl_b32 s46, s2, 9\ns_lshl_b32 s47, s{S_WAVE}, 6\ns_add_u32 s46, s46, s47\ns_add_u32 s46, s46, {WS_DBG}\nv_mov_b32 v40, 0\ns_mov_b64 exec, 1")
        A(f"buffer_store_dwordx4 v[24:27], v40, s[{S_WS}:{S_WS+3}], s46 offen\nbuffer_store_dwordx4 v[28:31], v40, s[{S_WS}:{S_WS+3}], s46 offen offset:16\nbuffer_store_dword v32, v40, s[{S_WS}:{S_WS+3}], s46 offen offset:32")
    A("s_endpgm")

def ln_loads8(A):
    A(f"v_and_b32 v2, 63, v0\nv_lshrrev_b32 v3, 3, v2\nv_mul_u32_u24 v3, 1152, v3\nv_and_b32 v4, 7, v2\nv_lshl_add_u32 v3, v4, 4, v3")
    A(f"s_and_b32 s44, s{S_J}, 1\ns_lshl_b32 s44, s44, 2\ns_xor_b32 s44, s44, s{S_WAVE}")
    A(f"s_lshl_b32 s40, s{S_RB}, 3\ns_add_u32 s41, s40, s44\ns_mul_i32 s41, s41, 9216")
    for i in range(9): A(f"buffer_load_dwordx4 v[{64+4*i}:{67+4*i}], v3, s[{S_X}:{S_X+3}], s41 offen offset:{128*i}")
    A(f"s_mov_b32 s45, 1\ns_cmp_ge_u32 s{S_WAVE}, 2\ns_cbranch_scc1 L_l1\ns_mov_b32 s45, 2\ns_xor_b32 s41, s44, 4\ns_add_u32 s41, s40, s41\ns_mul_i32 s41, s41, 9216")
    for i in range(9): A(f"buffer_load_dwordx4 v[{200+4*i}:{203+4*i}], v3, s[{S_X}:{S_X+3}], s41 offen offset:{128*i}")
    A("L_l1:")
    A(f"s_cmp_ge_u32 s{S_WAVE}, 4\ns_cbranch_scc1 L_l3")
    A(f"v_and_b32 v5, 31, v0\nv_lshlrev_b32 v5, 1, v5\ns_lshr_b32 s40, s{S_WAVE}, 1\ns_lshl_b32 s40, s40, 6\ns_mul_i32 s41, s{S_J}, 1152\ns_add_u32 s40, s40, s41")
    for t in range(9): A(f"buffer_load_ushort v{180+t}, v5, s[{S_MISC}:{S_MISC+3}], s40 offen offset:{128*t}")
    A(f"s_cmp_ge_u32 s{S_WAVE}, 2\ns_cbranch_scc1 L_l4\ns_waitcnt vmcnt(18)\ns_branch L_l2\nL_l3:\ns_waitcnt vmcnt(0)\nL_l4:\ns_waitcnt vmcnt(9)\nL_l2:")
def ln8(A):
    T = Asm(); G6.gen_ln(T, False)
    out = []
    skip = False
    for l in T.L:
        t = l.strip()
        if t in ("s_waitcnt vmcnt(9)", "s_mov_b32 s45, 2"): continue
        if t == f"s_lshl_b32 s40, s{S_WAVE}, 7":
            out += ["  s_lshr_b32 s40, s44, 2", "  s_lshl_b32 s40, s40, 10", "  s_and_b32 s41, s44, 3", "  s_lshl_b32 s41, s41, 7", "  s_add_u32 s40, s40, s41"]
            continue
        if t == "v_add_u32 v3, 1024, v3": out.append("  v_xor_b32 v3, 1024, v3"); continue
        if t == "v_add_u32 v4, 1024, v4": out.append("  v_xor_b32 v4, 1024, v4"); continue
        if t.startswith("v_and_b32 v5, 31, v0"): skip = True
        if skip and t.startswith("v_lshlrev_b32 v100"): skip = False
        if skip: continue
        out.append(l)
    A.L += out

def gen_mwave7(A, stamp):
    T = Asm(); G6.gen_mwave(T, False)
    txt = "\n".join(T.L)
    m = G6.gemm_stream(1)
    pre = txt[:txt.index("  s_barrier\n  ds_read_b128".replace("  ds_read_b128", "  v_add_u32 v2, s40, v60"))]
    A.L += pre.split("\n")
    A("s_setprio 2\ns_barrier")
    st(A, stamp, 0)
    lines = []
    for k, (mm, v) in enumerate(m):
        if mm == "mark": cur = v
        if mm == "t" and v == "s_barrier" and (cur // 9) % 4 == 3: lines.append(("t", "s_waitcnt vmcnt(0)"))
        lines.append((mm, v))
    emit_loop(A, lines, "L_g1", start=4, period=36, count=8, total=324)
    st(A, stamp, 1)
    A("s_barrier")
    A(f"s_lshl_b32 s46, s31, 12\nv_add_u32 v243, s46, v{vB0}\nv_add_u32 v246, 32768, v243")
    for t in range(9):
        acc = ACC + 16 * t; o = 248
        for x in range(16): A(f"v_mul_f32_e64 v{acc+x}, v{acc+x}, |v{acc+x}|")
        for x in range(8): A(f"v_cvt_pk_bf16_f32 v{o+x}, v{acc+2*x}, v{acc+2*x+1}")
        for x in range(8): A(f"v_pk_max_i16 v{o+x}, v{o+x}, 0")
        for h in range(2):
            if t < 4: A(f"ds_write_b128 v243, v[{o+4*h}:{o+4*h+3}] offset:{t*8192+h*2048}")
            else: A(f"ds_write_b128 v246, v[{o+4*h}:{o+4*h+3}] offset:{(t-4)*8192+h*2048}")
        if t == 3: A("s_barrier")
    A(f"s_lshl_b32 s47, s2, 2\ns_add_u32 s47, s47, s{S_WAVE}\ns_mul_i32 s47, s47, 18432\ns_add_u32 s47, s47, {WS_PART}")
    A(f"s_lshl_b32 s40, s{S_K0}, 11\nv_add_u32 v{vB}, s40, v{vB0}")
    A("s_waitcnt lgkmcnt(0)\ns_barrier")
    A(f"s_cmp_lt_i32 s{S_XC}, 0\ns_cbranch_scc1 L_m_nx\ns_barrier\ns_barrier\ns_barrier\nL_m_nx:")
    st(A, stamp, 2)
    emit_loop(A, G6.gemm_stream(2), "L_g2", 0, 0, 1, 324)
    st(A, stamp, 3)
    A("s_barrier")
    A(f"s_lshl_b32 s40, s2, 7\ns_lshl_b32 s41, s{S_WAVE}, 2\ns_add_u32 s40, s40, s41\ns_add_u32 s40, s40, {WS_FLAG}\nv_mov_b32 v2, s{S_NONCE}\nv_mov_b32 v3, 0")
    A(f"s_waitcnt vmcnt(0)\ns_mov_b64 exec, 1\nbuffer_store_dword v2, v3, s[{S_WS}:{S_WS+3}], s40 offen sc0 sc1\ns_mov_b64 exec, -1")
    st(A, stamp, 4)
    gen_tail_f1(A, "m", 2, S_WAVE)
    st(A, stamp, 5)
    A("s_branch L_f2")

def gen_helper7(A, stamp):
    A("L_helper:")
    A(f"s_sub_u32 s{S_HW}, s{S_WAVE}, 4\nv_and_b32 v{VL}, 63, v0\nv_and_b32 v1, 255, v0\ns_mov_b32 s{S_RT2}, {f32bits(0.7071067811865476)}")
    A(f"s_mov_b32 s{S_RT2+1}, s{S_RT2}")
    A("s_lshr_b32 s40, s2, 5\ns_lshl_b32 s40, s40, 3\ns_and_b32 s41, s2, 7\ns_add_u32 s40, s40, s41\ns_lshl_b32 s40, s40, 2\ns_bfe_u32 s41, s2, 0x20003\ns_add_u32 s40, s40, s41")
    slot_decode(A, 40, 98, 61)
    A(f"s_cmp_lt_i32 s{S_XC}, 0\ns_cbranch_scc1 L_nsd\ns_mov_b32 s40, s{S_XC}")
    slot_decode(A, 40, 99, S_XC)
    A("L_nsd:")
    A(f"s_waitcnt lgkmcnt(0)\ns_add_u32 s{S_NONCE}, s{S_NONCE}, 1")
    T0 = Asm(); G6.gen_loader_pre(T0)
    k = T0.L.index("  s_barrier")
    A.L += T0.L[:k]
    A(f"s_cmp_ge_u32 s{S_HW}, 2\ns_cbranch_scc1 L_h_w0")
    FF.fft_setup(A, R, 1, L_F, 56)
    A(f"s_lshr_b32 s40, s2, 3\ns_and_b32 s40, s40, 3\ns_lshl_b32 s40, s40, 1\ns_add_u32 s40, s40, s31\ns_min_u32 s40, s40, {CODE_PF7}-1\ns_lshl_b32 s40, s40, 13")
    A(f"s_getpc_b64 s[42:43]\ns_add_u32 s42, s42, main_entry@rel32@lo+4\ns_addc_u32 s43, s43, main_entry@rel32@hi+12\nv_lshlrev_b32 v232, 7, v{VL}\nv_add_u32 v232, s40, v232\nglobal_load_dword v131, v232, s[42:43]")
    A(f"s_cmp_ge_u32 s{S_J}, 5\ns_cbranch_scc1 L_nowt")
    G6.tw_dma(A)
    A("L_nowt:")
    A("s_call_b64 s[62:63], L_ld1\ns_call_b64 s[62:63], L_ld1")
    A(f"s_cmp_lt_u32 s{S_J}, 5\ns_cbranch_scc1 L_spf\ns_call_b64 s[62:63], L_ld1\ns_branch L_spf1\nL_spf:")
    def spf(nst):
        A(f"v_mov_b32 v232, v{VL}")
        for i in range((72 * nst + 63) // 64):
            divc(A, 9, 233, 234, 232, 235)
            A(f"v_and_b32 v235, 7, v233\nv_lshrrev_b32 v233, 3, v233\nv_lshl_add_u32 v233, v233, 4, v235\nv_mul_u32_u24 v233, 9216, v233\nv_lshl_add_u32 v233, v234, 7, v233")
            A(f"buffer_load_dword v131, v233, s[{S_W1}:{S_W1+3}], s52 offen\nv_add_u32 v232, 64, v232")
    spf(2)
    A("s_branch L_spf2\nL_spf1:")
    spf(1)
    A("L_spf2:")
    A(f"s_cmp_ge_u32 s{S_J}, 5\ns_cbranch_scc1 L_h_c0\ns_waitcnt vmcnt(21)\ns_branch L_h_c0")
    A("L_h_w0:\nL_h_c0:")
    A("s_waitcnt lgkmcnt(0)\ns_barrier")
    A(f"s_cmp_lt_u32 s{S_HW}, 2\ns_cbranch_scc1 L_h_c2")
    G6.gen_wt_loads(A)
    A("L_h_c2:")
    A(f"s_cmp_ge_u32 s{S_J}, 5\ns_cbranch_scc1 L_h_np0\ns_barrier")
    A(f"s_cmp_ge_u32 s{S_HW}, 2\ns_cbranch_scc1 L_h_np0\ns_call_b64 s[62:63], L_ld1\nL_h_np0:")
    def dma(gemm, tag):
        A(f"s_cbranch_vccz L_sk{tag}\ns_call_b64 s[62:63], L_ld{gemm}\nL_sk{tag}:".replace("s_cbranch_vccz", f"s_cmp_ge_u32 s{S_HW}, 2\ns_cbranch_scc1"))
    A(f"s_cmp_ge_u32 s{S_HW}, 2\ns_cbranch_scc1 L_b0\ns_waitcnt vmcnt(9)\nL_b0:\ns_barrier")
    A(f"s_cmp_ge_u32 s{S_HW}, 2\ns_cbranch_scc1 L_npr\ns_setprio 3\nL_npr:")
    def iv(gemm, tag, extra=None, wait="s_waitcnt vmcnt(9)"):
        dma(gemm, tag)
        if extra: extra()
        if wait: A(wait)
        A("s_barrier")
    A(f"s_cmp_ge_u32 s{S_HW}, 2\ns_cbranch_scc1 L_wk1")
    A("s_mov_b32 s45, 32\nL_hg1:"); G6.ld_stage(A, 1); A("s_waitcnt vmcnt(9)\ns_barrier\ns_sub_u32 s45, s45, 1\ns_cmp_lg_u32 s45, 0\ns_cbranch_scc1 L_hg1\ns_branch L_j32")
    A("L_wk1:")
    A(f"s_mul_i32 s40, s2, 9248\ns_lshl_b32 s41, s31, 4\ns_add_u32 s40, s40, s41\ns_add_u32 s40, s40, {WS_WT}\nv_lshlrev_b32 v{VX}, 5, v{VL}")
    A("s_waitcnt vmcnt(0)")
    for q in range(5):
        for u3 in range(4): A(f"v_lshl_or_b32 v{64+4*q+u3}, v{36+u3*5+q}, 16, v{16+u3*5+q}")
        if q == 4: A("s_mov_b32 exec_lo, -1\ns_mov_b32 exec_hi, 1")
        A(f"buffer_store_dwordx4 v[{64+4*q}:{67+4*q}], v{VX}, s[{S_WS}:{S_WS+3}], s40 offen sc0 sc1\ns_add_u32 s40, s40, 2048")
    A("s_mov_b64 exec, -1\ns_barrier")
    bg = Asm()
    bg.L += g_gen_lines([0], R.POOL)
    bg("s_waitcnt vmcnt(0)\n;BAR\n;BAR\n;NOBAR")
    bg(f"s_cmp_lg_u32 s{S_HW}, 2\ns_cbranch_scc1 L_nb1"); bump_counter(bg, 0, 254); bg("L_nb1:\n;OK")
    bg.L += g_gen_lines([1, 2], R.POOL)
    FF.fft_setup(bg, R, 1, L_F, 56)
    A.L += slice_bars(bg.L, 31, WSL1)
    A("L_j32:")
    def p1():
        A(f"s_cmp_lg_u32 s{S_HW}, 2\ns_cbranch_scc1 L_np1"); poll_counter(A, "L_poll1", 0, R.T); A("L_np1:")
    iv(1, "b32", p1)
    G6.g2_setup(A, 0)
    A("s_waitcnt vmcnt(0)")
    fft_loads(A, 98, R.POOL, 2); w_loads(A, 61)
    A(f"s_cmp_lt_i32 s{S_XC}, 0\ns_cbranch_scc1 L_nx1"); fft_loads(A, 99, XR2, 1); A("L_nx1:")
    iv(2, "b33", wait=None); iv(2, "b34", wait=None); iv(2, "b35", wait=None)
    st(A, stamp, 0)
    A(f"s_cmp_lt_u32 s{S_HW}, 2\ns_cbranch_scc1 L_wl27\ns_waitcnt vmcnt(0)")
    A(f"s_and_b32 s40, s{S_RB}, 15\ns_lshl_b32 s40, s40, 1\ns_add_u32 s40, s40, s31\ns_lshl_b32 s40, s40, 6\nv_add_u32 v{R.T}, s40, v{VL}\ns_mul_i32 s40, s{S_J}, {576*1152}")
    for i in range(3):
        A(f"v_min_u32 v{R.T+1}, 5183, v{R.T}\nv_lshlrev_b32 v{R.T+1}, 7, v{R.T+1}\nbuffer_load_dword v{R.T+2}, v{R.T+1}, s[{S_W2}:{S_W2+3}], s40 offen\nv_add_u32 v{R.T}, 2048, v{R.T}")
    A("L_wl27:\ns_waitcnt vmcnt(27)\ns_mov_b32 s60, 0")
    A("L_fft:")
    for a in range(8):
        p = R.POOL + 2 * a
        A(f"v_and_b32 v{p+1}, 0xffff0000, v{p}\nv_lshlrev_b32 v{p}, 16, v{p}")
    blocks, outs = FF.fft_column_blocks(A, R, S_RT2)
    for nm, b in blocks:
        if nm == "BAR": A("s_barrier")
        else:
            for line in b.L:
                if line.strip() == ";WAITW":
                    A("s_cmp_eq_u32 s60, 0\ns_cbranch_scc1 L_nww\ns_waitcnt vmcnt(0)\nL_nww:")
                    for i in range(8): A(f"v_and_b32 v{R.WP+2*i+1}, 0xffff0000, v{R.WV+i}\nv_lshlrev_b32 v{R.WP+2*i}, 16, v{R.WV+i}")
                else: A.L.append(line)
            if nm == "i2": A(f"s_cmp_ge_u32 s{S_HW}, 2\ns_cbranch_scc1 L_nlw\ns_cmp_eq_u32 s60, 1\ns_cbranch_scc1 L_nlw\ns_waitcnt vmcnt(2)\nL_nlw:")
            if nm == "f4":
                A(f"s_cmp_eq_u32 s60, 1\ns_cbranch_scc1 L_nw2\ns_cmp_lt_i32 s{S_XC}, 0\ns_cbranch_scc1 L_nw2"); w_loads(A, S_XC); A("L_nw2:")
    A(f"s_lshl_b32 s56, s61, 6\ns_add_u32 s56, s56, {WS_Z}")
    for a in range(8):
        A(f"buffer_store_dword v{outs[a]}, v{R.GZ}, s[{S_WS}:{S_WS+3}], s56 offen sc0 sc1")
        if a < 7: A(f"s_add_u32 s56, s56, {16*18496}")
    A(f"s_cmp_eq_u32 s60, 1\ns_cbranch_scc1 L_fftd\ns_cmp_lt_i32 s{S_XC}, 0\ns_cbranch_scc1 L_fftd")
    A(f"s_mov_b32 s61, s{S_XC}\ns_mov_b32 s60, 1")
    for a in range(8): A(f"v_mov_b32 v{R.POOL+2*a}, v{XR2+a}")
    A("s_barrier\ns_branch L_fft\nL_fftd:")
    st(A, stamp, 1)
    A(f"s_cmp_ge_u32 s{S_HW}, 2\ns_cbranch_scc1 L_wk2")
    for grp in range(3):
        if grp: G6.g2_setup(A, grp)
        A(f"s_mov_b32 s45, {9 if grp == 0 else 12}\nL_hl{grp}:"); G6.ld_stage(A, 2)
        A(f"s_waitcnt vmcnt(9)\ns_barrier\ns_sub_u32 s45, s45, 1\ns_cmp_lg_u32 s45, 0\ns_cbranch_scc1 L_hl{grp}")
    A("s_waitcnt vmcnt(0)\ns_barrier\ns_barrier\ns_barrier\ns_branch L_f2")
    A("L_wk2:")
    W = Asm()
    W("s_waitcnt vmcnt(0)\n;BAR\n;BAR\n;NOBAR")
    W(f"s_cmp_lg_u32 s{S_HW}, 2\ns_cbranch_scc1 L_nb2"); bump_counter(W, 1, 2); W("L_nb2:\n;OK")
    W.L += g_gen_lines([3, 4], 8)
    pre = slice_bars(W.L, P3_START, WSL1)
    W = Asm()
    W(";NOBAR")
    poll_counter(W, "L_poll2", 1, 2)
    W(f"s_lshl_b32 s40, s{S_RB}, 2\ns_lshr_b32 s41, s{S_J}, 1\ns_add_u32 s40, s40, s41\ns_mul_i32 s40, s40, 18496\ns_add_u32 s40, s40, {WS_Z}\ns_lshl_b32 s41, s31, 6\ns_add_u32 s40, s40, s41")
    W(f"v_lshrrev_b32 v2, 2, v{VL}\nv_lshlrev_b32 v2, 7, v2\nv_and_b32 v3, 3, v{VL}\nv_lshl_add_u32 v2, v3, 4, v2\ns_lshl_b32 s42, s31, 13\ns_add_u32 s42, s42, {L_F}")
    for e in range(8): W(f"s_add_u32 m0, s42, {1024*e}\ns_add_u32 s41, s40, {2048*e}\nbuffer_load_dwordx4 v2, s[{S_WS}:{S_WS+3}], s41 offen lds")
    W(f"v_lshrrev_b32 v3, 5, v{VL}\nv_lshlrev_b32 v3, 10, v3\nv_and_b32 v4, 31, v{VL}\nv_lshl_add_u32 v3, v4, 1, v3\ns_add_u32 s41, s40, {128*128}")
    for i in range(8): W(f"buffer_load_ushort v{8+i}, v3, s[{S_WS}:{S_WS+3}], s41 offen offset:{128*i}")
    W(";OK\n;BAR")
    W(f"v_lshrrev_b32 v2, 5, v{VL}\nv_lshlrev_b32 v2, 3, v2\nv_bfe_u32 v3, v{VL}, 2, 2\nv_add_u32 v2, v2, v3\nv_lshlrev_b32 v2, 6, v2")
    W(f"v_bfe_u32 v3, v{VL}, 4, 1\nv_lshlrev_b32 v3, 5, v3\nv_and_b32 v4, 3, v{VL}\nv_lshlrev_b32 v4, 3, v4\nv_add3_u32 v2, v2, v3, v4\nv_add_u32 v2, s42, v2")
    W(";BAR\n;BAR\ns_waitcnt vmcnt(0)")
    for kap in range(8):
        b_ = 24 + 4 * kap
        W(f"ds_read_b64_tr_b16 v[{b_}:{b_+1}], v2 offset:{kap*1024}\nds_read_b64_tr_b16 v[{b_+2}:{b_+3}], v2 offset:{kap*1024+256}")
        if kap == 4: W("s_waitcnt lgkmcnt(0)")
    for x in range(4): W(f"v_lshl_or_b32 v{56+x}, v{9+2*x}, 16, v{8+2*x}")
    W(f"v_and_b32 v2, 1, v{VL}\nv_cmp_eq_u32 s[58:59], 0, v2\nv_mov_b32 v3, -1.0\nv_mov_b32 v4, 1.0\nv_cndmask_b32 v3, v3, v4, s[58:59]\ns_waitcnt lgkmcnt(0)")
    accs = [8] + [gt_reg(t - 1, 0) for t in range(1, 5)]
    PQr = lambda t: gt_reg(t, 0) + 16
    ADr = lambda t: gt_reg(t, 0) + 24
    def post(t):
        acc = accs[t]
        for rr in range(8): W(f"v_cndmask_b32 v{acc+rr}, v{acc+8+rr}, v{acc+rr}, s[58:59]")
        for rr in range(8): W(f"v_mul_f32 v{PQr(t)+rr}, v3, v{acc+rr}")
        for rr in range(8): W(f"v_add_f32_dpp v{PQr(t)+rr}, v{acc+rr}, v{PQr(t)+rr} quad_perm:[1,0,3,2] row_mask:0xf bank_mask:0xf")
    for t in range(5):
        acc = accs[t]
        for kap in range(9):
            g = gt_reg(t, kap); b_ = 24 + 4 * kap
            c = "0" if kap == 0 else f"v[{acc}:{acc+15}]"
            W(f"v_mfma_f32_32x32x16_bf16 v[{acc}:{acc+15}], v[{g}:{g+3}], v[{b_}:{b_+3}], {c}")
        if t > 0: W("s_nop 2"); post(t - 1)
    W(f"v_bfe_u32 v4, v{VL}, 1, 4\nv_mul_u32_u24 v4, 416, v4\nv_mul_u32_u24 v5, 9216, v2\ns_mul_i32 s56, s31, {RHALF}\nv_add3_u32 v4, v4, v5, s56\nv_add_u32 v4, 9216, v4")
    W(f"v_lshrrev_b32 v5, 5, v{VL}\nv_lshlrev_b32 v5, 4, v5\nv_sub_u32 v6, 0x180, v5\nv_cndmask_b32 v5, v6, v5, s[58:59]\nv_add_u32 v4, v4, v5")
    W("v_mov_b32 v5, -4\nv_mov_b32 v6, 4\nv_cndmask_b32 v5, v5, v6, s[58:59]")
    post(4)
    for t in range(5):
        for rr in range(8): W(f"v_mad_i32_i24 v{ADr(t)+rr}, v5, {8*(rr>>2) + (rr&3)}, v4")
        W("v_lshl_add_u32 v4, v5, 4, v4")
    A.L += pre + slice_bars(W.L, 35 - P3_START, WSL2)
    st(A, stamp, 2)
    for t in range(5):
        for rr in range(8): A(f"ds_write_b32 v{ADr(t)+rr}, v{PQr(t)+rr}")
    st(A, stamp, 3)
    A("s_barrier")
    A(f"s_add_u32 s56, s{S_HW}, 6")
    gen_tail_f1(A, "h", 1, 56)
    A("s_branch L_f2")
    for gemm in (1, 2):
        A(f"L_ld{gemm}:"); G6.ld_stage(A, gemm); A("s_setpc_b64 s[62:63]")

CODE_PF7 = 5
P3_START = 19
WSL1 = 32
WSL2 = 48
def gen_kernel(name, stamp=False):
    A = Asm()
    A("main_entry:")
    if stamp: A("s_memtime s[92:93]\ns_memrealtime s[94:95]")
    A("s_cmp_ge_u32 s2, 256\ns_cbranch_scc1 L_exit")
    A("s_load_dwordx2 s[4:5], s[0:1], 0\ns_load_dwordx2 s[8:9], s[0:1], 32\ns_load_dwordx2 s[12:13], s[0:1], 48\ns_load_dwordx2 s[16:17], s[0:1], 80")
    A(f"s_load_dwordx2 s[20:21], s[0:1], 40\ns_load_dwordx2 s[32:33], s[0:1], 8\ns_load_dwordx2 s[36:37], s[0:1], 16")
    A(f"s_load_dwordx2 s[{S_OUT}:{S_OUT+1}], s[0:1], 64\ns_load_dwordx2 s[{S_B2}:{S_B2+1}], s[0:1], 56\ns_load_dwordx2 s[{S_DBGP}:{S_DBGP+1}], s[0:1], 72")
    A(f"v_lshrrev_b32 v1, 6, v0\ns_nop 0\nv_readfirstlane_b32 s{S_WAVE}, v1")
    A(f"s_mov_b32 s6, 2359296\ns_mov_b32 s7, 0x00020000\ns_mov_b32 s10, 5308416\ns_mov_b32 s11, 0x00020000\ns_mov_b32 s14, 5308416\ns_mov_b32 s15, 0x00020000")
    A(f"s_mov_b32 s18, {WS_SIZE}\ns_mov_b32 s19, 0x00020000\ns_mov_b32 s22, 9216\ns_mov_b32 s23, 0x00020000")
    A(f"s_mov_b32 s34, {2048*578}\ns_mov_b32 s35, 0x00020000\ns_mov_b32 s38, {2048*578}\ns_mov_b32 s39, 0x00020000")
    A(f"s_mov_b32 s{S_OUT+2}, 2359296\ns_mov_b32 s{S_OUT+3}, 0x00020000\ns_mov_b32 s{S_B2+2}, 1152\ns_mov_b32 s{S_B2+3}, 0x00020000")
    A(f"s_and_b32 s40, s2, 6\ns_bfe_u32 s41, s2, 0x10003\ns_add_u32 s{S_J}, s40, s41")
    A(f"s_and_b32 s40, s2, 1\ns_lshl_b32 s40, s40, 4\ns_lshr_b32 s41, s2, 4\ns_add_u32 s{S_RB}, s40, s41")
    A(f"s_and_b32 s40, s{S_RB}, 15\ns_cmp_ge_u32 s40, 9\ns_cselect_b32 s41, 9, 0\ns_sub_u32 s40, s40, s41\ns_lshl_b32 s{S_K0}, s40, 2")
    A(f"s_mul_i32 s40, s{S_RB}, 3\ns_add_u32 s40, s40, s{S_J}\ns_add_u32 s40, s40, 251\ns_cmp_lt_u32 s40, 296\ns_cselect_b32 s{S_XC}, s40, -1\ns_cmp_lt_u32 s{S_J}, 5\ns_cselect_b32 s{S_XC}, -1, s{S_XC}")
    A("s_waitcnt lgkmcnt(0)")
    A(f"s_load_dword s{S_NONCE}, s[16:17], {WS_E}")
    A(f"s_and_b32 s40, s{S_WAVE}, 6\ns_cmp_eq_u32 s40, 4\ns_cbranch_scc1 L_helper")
    ln_loads8(A)
    ln8(A)
    A(f"s_cmp_ge_u32 s{S_WAVE}, 4\ns_cbranch_scc1 L_helper")
    A(f"s_waitcnt lgkmcnt(0)\ns_add_u32 s{S_NONCE}, s{S_NONCE}, 1")
    gen_mwave7(A, stamp)
    gen_helper7(A, stamp)
    gen_tail_f2(A, stamp)
    A("L_exit:\ns_endpgm")
    return kernel_header(name) + A.text() + kernel_desc(name, 256, 100) + data_section()

if __name__ == "__main__":
    import sys
    stamp = len(sys.argv) > 1
    hdr = open("cdna_kernels/" + NAME + ".s.ref").read().split("; Override")[0]
    src = hdr + f"; @launch grid=(256,1,1) block=(512,1,1) lds={LDS_BYTES}\n" + '.amdgcn_target "amdgcn-amd-amdhsa--gfx950"\n' + gen_kernel(NAME + "_kernel", stamp)
    open("v12.s", "w").write(src)
```

```python
from asmlib import *
import gen6 as G6
from gen6 import *
import gen_fft12 as FF

S_OUT = 64
S_B2 = 68
S_DBGP = 72
S_HW, S_XC, S_RT2 = 30, 28, 96
R = FF.FFTRegs(2)
GB = 132
XR2 = 248
SPIN_MAX = 100000
L_GT = L_H
GTP = 1296
def pq_addr(par, typ): return par * RHALF + 9216 + typ * 9216
STB = 76
def st(A, stamp, n):
    if stamp: A(f"s_memtime s[{STB+2*n}:{STB+1+2*n}]")

WS_PF = 0x200000
WS_AF = 0x70000
def poll_counter(A, name, which, vt):
    A(f"v_lshlrev_b32 v{vt}, 4, v{VL}\ns_mov_b32 s55, 0\ns_mov_b32 s56, {WS_AF + 1024*which}")
    A(f"{name}:\nbuffer_load_dwordx4 v[{vt+2}:{vt+5}], v{vt}, s[{S_WS}:{S_WS+3}], s56 offen sc0 sc1\ns_waitcnt vmcnt(0)")
    A(f"v_xor_b32 v{vt+2}, s{S_NONCE}, v{vt+2}\nv_xor_b32 v{vt+3}, s{S_NONCE}, v{vt+3}\nv_xor_b32 v{vt+4}, s{S_NONCE}, v{vt+4}\nv_xor_b32 v{vt+5}, s{S_NONCE}, v{vt+5}")
    A(f"v_or_b32 v{vt+2}, v{vt+2}, v{vt+3}\nv_or3_b32 v{vt+2}, v{vt+2}, v{vt+4}, v{vt+5}")
    A(f"v_cmp_ne_u32 vcc, 0, v{vt+2}\ns_add_u32 s55, s55, 1\ns_cmp_gt_u32 s55, {SPIN_MAX}\ns_cbranch_scc1 {name}_ok\ns_cmp_eq_u64 vcc, 0\ns_cbranch_scc1 {name}_ok\ns_sleep 4\ns_branch {name}\n{name}_ok:")
def bump_counter(A, which, vt):
    A(f"s_lshl_b32 s55, s2, 2\ns_add_u32 s55, s55, {WS_AF + 1024*which}\nv_mov_b32 v{vt}, 0\nv_mov_b32 v{vt+1}, s{S_NONCE}\ns_mov_b64 exec, 1")
    A(f"buffer_store_dword v{vt+1}, v{vt}, s[{S_WS}:{S_WS+3}], s55 offen sc0 sc1\ns_mov_b64 exec, -1")

def gt_reg(t, kap): return (132 + 36 * t if t < 3 else 60 + 36 * (t - 3)) + 4 * kap
def g_gen_lines(tiles, T):
    A = Asm(); V = T + 8
    A(f"s_and_b32 s56, s{S_J}, 1\ns_mul_i32 s56, s56, 72")
    A(f"v_and_b32 v{T}, 15, v{VL}\nv_add_u32 v{T}, s56, v{T}\nv_cvt_f32_u32 v{T}, v{T}")
    A(f"v_lshrrev_b32 v{T+1}, 5, v{VL}\nv_lshlrev_b32 v{T+1}, 4, v{T+1}\nv_add_u32 v{T+1}, s31, v{T+1}\nv_cvt_f32_u32 v{T+1}, v{T+1}")
    A(f"v_bfe_u32 v{T+2}, v{VL}, 4, 1\nv_cvt_f32_u32 v{T+2}, v{T+2}\nv_mul_f32 v{T+2}, 0.25, v{T+2}")
    for t in tiles:
        A(f"v_add_f32 v{T+3}, {16.0*t}, v{T}\nv_mul_f32 v{T+3}, {1.0/576}, v{T+3}\nv_fma_f32 v{T+4}, v{T+3}, v{T+1}, v{T+2}")
        A(f"v_mul_f32 v{T+6}, 32.0, v{T+3}\nv_cos_f32 v{T+6}, v{T+6}")
        for i in range(8): A(f"v_fmamk_f32 v{V+i}, v{T+3}, {f32bits(float(2*i))}, v{T+4}\nv_fmamk_f32 v{V+8+i}, v{T+3}, {f32bits(float(2*i-32))}, v{T+4}")
        A(f"v_add_f32 v{T+6}, v{T+6}, v{T+6}")
        for i in range(16): A(f"v_cos_f32 v{V+i}, v{V+i}")
        for kap in range(9):
            g = gt_reg(t, kap); cur = V + 8 * (kap % 2); prv = V + 8 * ((kap + 1) % 2)
            if kap == 0:
                A(f"v_cmp_eq_f32 vcc, 0, v{T+1}\nv_mul_f32 v{T+5}, 0.5, v{cur}\ns_nop 0\nv_cndmask_b32 v{T+5}, v{cur}, v{T+5}, vcc")
                A(f"v_cvt_pk_bf16_f32 v{g}, v{T+5}, v{cur+1}")
            else: A(f"v_cvt_pk_bf16_f32 v{g}, v{cur}, v{cur+1}")
            for x in range(1, 4): A(f"v_cvt_pk_bf16_f32 v{g+x}, v{cur+2*x}, v{cur+1+2*x}")
            if kap < 8:
                for i in range(8): A(f"v_fma_f32 v{prv+i}, v{T+6}, v{cur+i}, -v{prv+i}")
    return A.L
def slice_bars(lines, nbar, wsl):
    nb = 0; run = 0; out = []; hold = False
    for l in lines:
        t = l.strip()
        if t == ";BAR": out.append("  s_barrier"); nb += 1; run = 0; continue
        if t == ";NOBAR": hold = True; continue
        if t == ";OK": hold = False; continue
        out.append(l); run += 2 if "v_cos" in t or "v_sin" in t else (8 if "mfma" in t else 1)
        if run >= wsl and not hold:
            out.append("  s_barrier"); nb += 1; run = 0
    assert nb <= nbar, nb
    print("slice: used", nb, "of", nbar)
    return out + ["  s_barrier"] * (nbar - nb)

def slot_decode(A, s_slot, s_x1, s_col):
    A(f"s_mov_b32 s56, 0\ns_mov_b32 s57, s{s_slot}")
    for ty, base in ((1, 76), (2, 152), (3, 224)):
        A(f"s_sub_u32 s58, s{s_slot}, {base}\ns_cmp_ge_u32 s{s_slot}, {base}\ns_cselect_b32 s56, {ty}, s56\ns_cselect_b32 s57, s58, s57")
    A("s_min_u32 s57, s57, 72")
    A("s_cmp_eq_u32 s56, 3\ns_cselect_b32 s58, 1, 0\ns_max_u32 s57, s57, s58")
    A(f"s_mov_b32 s{s_col}, s57\ns_sub_u32 s58, 288, s57\ns_cmp_eq_u32 s56, 1\ns_cselect_b32 s{s_col}, s58, s{s_col}")
    A(f"s_add_u32 s58, s57, 144\ns_cmp_eq_u32 s56, 2\ns_cselect_b32 s{s_col}, s58, s{s_col}\ns_sub_u32 s58, 144, s57\ns_cmp_eq_u32 s56, 3\ns_cselect_b32 s{s_col}, s58, s{s_col}")
    A(f"s_mul_i32 s58, s56, 20\ns_lshr_b32 s59, s57, 2\ns_add_u32 s58, s58, s59\ns_lshl_b32 s58, s58, 15\ns_and_b32 s59, s57, 3\ns_lshl_b32 s59, s59, 2\ns_add_u32 s58, s58, s59\ns_add_u32 s{s_x1}, s58, {WS_X1}")
def fft_loads(A, s_x1, xdst, stride):
    A(f"v_lshlrev_b32 v{R.GX}, 4, v1\ns_mov_b32 s56, s{s_x1}")
    for a in range(8): A(f"buffer_load_dword v{xdst+stride*a}, v{R.GX}, s[{S_WS}:{S_WS+3}], s56 offen\ns_add_u32 s56, s56, 4096")
def w_loads(A, s_col):
    A(f"v_mul_u32_u24 v{R.T}, 10240, v1\ns_lshl_b32 s56, s{s_col}, 5\ns_add_u32 s56, s56, {WS_WT}")
    A(f"buffer_load_dwordx4 v[{R.WV}:{R.WV+3}], v{R.T}, s[{S_WS}:{S_WS+3}], s56 offen\nbuffer_load_dwordx4 v[{R.WV+4}:{R.WV+7}], v{R.T}, s[{S_WS}:{S_WS+3}], s56 offen offset:16")

def dc_sel(A, s0, vals):
    A(f"s_and_b32 s55, s{S_J}, 1\ns_cmp_eq_u32 s55, 0")
    for i, (a, b) in enumerate(vals): A(f"s_cselect_b32 s{s0+i}, {a}, {b}")

def gen_tail(A, stamp):
    A("L_tail:")
    dc_sel(A, 42, [(0, 144), (9, 18), (27, 99)])
    A(f"s_lshl_b32 s40, s{S_RB}, 2\ns_lshr_b32 s41, s{S_J}, 1\ns_add_u32 s40, s40, s41")
    A(f"s_mul_i32 s46, s40, {16*1152}\ns_mul_i32 s47, s40, 18496\ns_add_u32 s47, s47, {WS_Z + 288*64}")
    A(f"s_mov_b32 s48, {f32bits(2.0/(576*2048))}\ns_mov_b32 s49, {f32bits(-1.4426950408889634)}")
    A(f"s_and_b32 s40, s{S_RB}, 15\ns_lshl_b32 s40, s40, 4\ns_lshr_b32 s41, s{S_RB}, 4\ns_add_u32 s40, s40, s41")
    A(f"v_bfe_u32 v2, v240, 1, 1\nv_lshlrev_b32 v2, 3, v2\nv_bfe_u32 v3, v240, 2, 2\nv_lshl_add_u32 v2, v3, 1, v2\nv_add_u32 v2, s40, v2\nv_lshlrev_b32 v2, 9, v2")
    A(f"v_and_b32 v3, 1, v240\nv_lshl_add_u32 v2, v3, 8, v2\ns_lshr_b32 s41, s{S_J}, 2\ns_lshl_b32 s50, s41, 7\ns_add_u32 s50, s50, {WS_PF}")
    A(f"s_mul_i32 s40, s40, 73728\ns_mul_i32 s41, s41, 18432\ns_add_u32 s40, s40, s41\ns_bfe_u32 s41, s{S_J}, 0x10001\ns_lshl_b32 s41, s41, 8\ns_add_u32 s40, s40, s41\ns_add_u32 s51, s40, {WS_PART}")
    A(f"s_mov_b32 s52, s{S_WAVE}\ns_mov_b32 s53, 0")
    A("L_tl:")
    A(f"v_and_b32 v4, 15, v240\nv_lshrrev_b32 v5, 4, v240\ns_lshl_b32 s40, s52, 2\nv_add_u32 v5, s40, v5")
    A(f"v_mov_b32 v7, 0x120\nv_cmp_le_u32 vcc, s43, v5\ns_nop 1\nv_cndmask_b32 v6, 0, 1, vcc\nv_cmp_le_u32 vcc, s44, v5\ns_nop 1\nv_addc_co_u32 v6, vcc, 0, v6, vcc")
    A(f"v_lshlrev_b32 v8, 4, v5\nv_add_u32 v8, s42, v8\nv_mad_u32_u24 v8, v6, v7, v8")
    A(f"buffer_load_dwordx4 v[100:103], v8, s[{S_B2}:{S_B2+3}], 0 offen")
    A(f"v_mul_u32_u24 v9, 1152, v4\nv_add_u32 v115, v8, v9\nbuffer_load_dwordx4 v[104:107], v115, s[{S_X}:{S_X+3}], s46 offen")
    A(f"v_lshlrev_b32 v9, 2, v4\nbuffer_load_dword v108, v9, s[{S_WS}:{S_WS+3}], s47 offen")
    A(f"v_lshrrev_b32 v9, 4, v8\nv_bfe_u32 v10, v9, 2, 1\nv_mul_u32_u24 v10, 36864, v10\nv_lshrrev_b32 v11, 3, v9\nv_lshl_add_u32 v10, v11, 11, v10\nv_and_b32 v11, 3, v9\nv_lshl_add_u32 v10, v11, 9, v10\nv_lshl_add_u32 v114, v4, 4, v10")
    A(f"v_cvt_f32_u32 v6, v5\nv_add_f32 v6, 0.5, v6\nv_mul_f32 v6, {1.0/9}, v6\nv_cvt_u32_f32 v6, v6\nv_mul_u32_u24 v7, 9, v6\nv_sub_u32 v7, v5, v7")
    A(f"v_and_b32 v8, 1, v6\nv_mul_u32_u24 v9, 416, v4\nv_lshl_add_u32 v9, v7, 5, v9\nv_mul_u32_u24 v8, {9216+96}, v8\nv_add_u32 v113, v9, v8")
    A("v_add_u32 v8, 1, v6\nv_and_b32 v8, 2, v8\nv_lshlrev_b32 v8, 30, v8\nv_xor_b32 v112, 1.0, v8")
    A("s_cmp_lg_u32 s53, 0\ns_cbranch_scc1 L_t2")
    A(f"s_cmp_ge_u32 s{S_WAVE}, 4\ns_cbranch_scc1 L_t1")
    A(f"s_lshl_b32 s40, s2, 9\ns_lshl_b32 s41, s{S_WAVE}, 7\ns_add_u32 s40, s40, s41\ns_add_u32 s40, s40, {WS_PF}\nv_mov_b32 v6, s{S_NONCE}\nv_mov_b32 v7, 0")
    A(f"s_waitcnt vmcnt(3)\ns_mov_b64 exec, 1\nbuffer_store_dword v6, v7, s[{S_WS}:{S_WS+3}], s40 offen sc0 sc1\ns_mov_b64 exec, -1")
    A("L_t1:")
    st(A, stamp, 4)
    A(f"s_cmp_lg_u32 s{S_WAVE}, 5\ns_cbranch_scc1 L_t3\ns_mov_b32 s55, 0\ns_mov_b64 exec, 0xffff")
    A(f"L_pf:\nbuffer_load_dword v3, v2, s[{S_WS}:{S_WS+3}], s50 offen sc0 sc1\ns_waitcnt vmcnt(0)")
    A(f"v_cmp_ne_u32 vcc, s{S_NONCE}, v3\ns_add_u32 s55, s55, 1\ns_cmp_gt_u32 s55, {SPIN_MAX}\ns_cbranch_scc1 L_t4\ns_cmp_eq_u64 vcc, 0\ns_cbranch_scc1 L_t4\ns_mov_b64 exec, vcc\ns_sleep 3\ns_branch L_pf")
    A("L_t4:\ns_mov_b64 exec, -1\nL_t3:\ns_waitcnt lgkmcnt(0)\ns_barrier")
    A("L_t2:")
    st(A, stamp, 5)
    for jp in range(8):
        dw = (jp & 1) * 8 + (jp >> 1) * 2
        A(f"s_add_u32 s40, s51, {dw*73728}\nbuffer_load_dwordx4 v[{64+4*jp}:{67+4*jp}], v114, s[{S_WS}:{S_WS+3}], s40 offen")
    A(f"ds_read_b128 v[40:43], v113 offset:{pq_addr(0,0)}\nds_read_b128 v[44:47], v113 offset:{pq_addr(0,0)+16}\nds_read_b128 v[48:51], v113 offset:{pq_addr(1,0)}\nds_read_b128 v[52:55], v113 offset:{pq_addr(1,0)+16}")
    A("s_waitcnt vmcnt(8)")
    for x in range(4): A(f"v_lshlrev_b32 v{32+2*x}, 16, v{100+x}\nv_and_b32 v{33+2*x}, 0xffff0000, v{100+x}\nv_lshlrev_b32 v{16+2*x}, 16, v{104+x}\nv_and_b32 v{17+2*x}, 0xffff0000, v{104+x}")
    A("v_lshlrev_b32 v62, 16, v108\nv_mul_f32 v62, 0.5, v62\ns_waitcnt lgkmcnt(0)")
    for e in range(8):
        A(f"v_fma_f32 v{40+e}, v{48+e}, v112, v{40+e}")
    for e in range(8):
        A(("v_add_f32" if e % 2 == 0 else "v_sub_f32") + f" v{40+e}, v{40+e}, v62")
    for e in range(8): A(f"v_mul_f32 v{40+e}, s48, v{40+e}")
    for jp in range(8):
        A(f"s_waitcnt vmcnt({7-jp})")
        for x in range(4):
            src = 64 + 4 * jp + x; t = 8 + 2 * (x % 2)
            A(f"v_lshlrev_b32 v{t}, 16, v{src}\nv_and_b32 v{t+1}, 0xffff0000, v{src}\nv_pk_add_f32 v[{32+2*x}:{33+2*x}], v[{32+2*x}:{33+2*x}], v[{t}:{t+1}]")
    for e in range(8): A(f"v_mul_f32 v{48+e}, s49, v{32+e}")
    for e in range(8): A(f"v_exp_f32 v{48+e}, v{48+e}")
    for e in range(8): A(f"v_add_f32 v{48+e}, 1.0, v{48+e}")
    for e in range(8): A(f"v_rcp_f32 v{48+e}, v{48+e}")
    for e in range(8): A(f"v_mul_f32 v{40+e}, v{40+e}, v{32+e}")
    for e in range(8): A(f"v_fma_f32 v{16+e}, v{40+e}, v{48+e}, v{16+e}")
    for x in range(4): A(f"v_cvt_pk_bf16_f32 v{56+x}, v{16+2*x}, v{17+2*x}")
    A(f"buffer_store_dwordx4 v[56:59], v115, s[{S_OUT}:{S_OUT+3}], s46 offen")
    A(f"s_cmp_lg_u32 s52, 4\ns_cbranch_scc1 L_f2e\ns_mov_b32 s52, 8\ns_mov_b32 s53, 1\ns_branch L_tl")
    A("L_f2e:")
    A(f"s_or_b32 s40, s2, s{S_WAVE}\ns_cmp_lg_u32 s40, 0\ns_cbranch_scc1 L_noe\nv_mov_b32 v2, s{S_NONCE}\nv_mov_b32 v3, 0\ns_mov_b32 s41, {WS_E}\ns_mov_b64 exec, 1\nbuffer_store_dword v2, v3, s[{S_WS}:{S_WS+3}], s41 offen\ns_mov_b64 exec, -1\nL_noe:")
    if stamp:
        A(f"s_waitcnt vmcnt(0)\ns_memtime s[{STB+14}:{STB+15}]\ns_memrealtime s[74:75]\ns_waitcnt lgkmcnt(0)\ns_sub_u32 s74, s74, s94")
        for i in range(8): A(f"s_sub_u32 s{STB+2*i}, s{STB+2*i}, s92\nv_mov_b32 v{24+i}, s{STB+2*i}")
        A("v_mov_b32 v32, s74\nv_mov_b32 v33, s94")
        A(f"s_lshl_b32 s46, s2, 9\ns_lshl_b32 s47, s{S_WAVE}, 6\ns_add_u32 s46, s46, s47\ns_add_u32 s46, s46, {WS_DBG}\nv_mov_b32 v40, 0\ns_mov_b64 exec, 1")
        A(f"buffer_store_dwordx4 v[24:27], v40, s[{S_WS}:{S_WS+3}], s46 offen\nbuffer_store_dwordx4 v[28:31], v40, s[{S_WS}:{S_WS+3}], s46 offen offset:16\nbuffer_store_dwordx2 v[32:33], v40, s[{S_WS}:{S_WS+3}], s46 offen offset:32")
    A("s_endpgm")

def ln_loads8(A):
    A(f"v_and_b32 v2, 63, v0\nv_lshrrev_b32 v3, 3, v2\nv_mul_u32_u24 v3, 1152, v3\nv_and_b32 v4, 7, v2\nv_lshl_add_u32 v3, v4, 4, v3")
    A(f"s_and_b32 s44, s{S_J}, 1\ns_lshl_b32 s44, s44, 2\ns_xor_b32 s44, s44, s{S_WAVE}")
    A(f"s_lshl_b32 s40, s{S_RB}, 3\ns_add_u32 s41, s40, s44\ns_mul_i32 s41, s41, 9216")
    for i in range(9): A(f"buffer_load_dwordx4 v[{64+4*i}:{67+4*i}], v3, s[{S_X}:{S_X+3}], s41 offen offset:{128*i}")
    A(f"s_mov_b32 s45, 1\ns_cmp_ge_u32 s{S_WAVE}, 2\ns_cbranch_scc1 L_l1\ns_mov_b32 s45, 2\ns_xor_b32 s41, s44, 4\ns_add_u32 s41, s40, s41\ns_mul_i32 s41, s41, 9216")
    for i in range(9): A(f"buffer_load_dwordx4 v[{200+4*i}:{203+4*i}], v3, s[{S_X}:{S_X+3}], s41 offen offset:{128*i}")
    A("L_l1:")
    A(f"s_cmp_ge_u32 s{S_WAVE}, 4\ns_cbranch_scc1 L_l3")
    A(f"v_and_b32 v5, 31, v0\nv_lshlrev_b32 v5, 1, v5\ns_lshr_b32 s40, s{S_WAVE}, 1\ns_lshl_b32 s40, s40, 6\ns_mul_i32 s41, s{S_J}, 1152\ns_add_u32 s40, s40, s41")
    for t in range(9): A(f"buffer_load_ushort v{180+t}, v5, s[{S_MISC}:{S_MISC+3}], s40 offen offset:{128*t}")
    A(f"s_cmp_ge_u32 s{S_WAVE}, 2\ns_cbranch_scc1 L_l4\ns_waitcnt vmcnt(18)\ns_branch L_l2\nL_l3:\ns_waitcnt vmcnt(0)\nL_l4:\ns_waitcnt vmcnt(9)\nL_l2:")
def ln8(A):
    T = Asm(); G6.gen_ln(T, False)
    out = []
    skip = False
    for l in T.L:
        t = l.strip()
        if t in ("s_waitcnt vmcnt(9)", "s_mov_b32 s45, 2"): continue
        if t == f"s_lshl_b32 s40, s{S_WAVE}, 7":
            out += ["  s_lshr_b32 s40, s44, 2", "  s_lshl_b32 s40, s40, 10", "  s_and_b32 s41, s44, 3", "  s_lshl_b32 s41, s41, 7", "  s_add_u32 s40, s40, s41"]
            continue
        if t == "v_add_u32 v3, 1024, v3": out.append("  v_xor_b32 v3, 1024, v3"); continue
        if t == "v_add_u32 v4, 1024, v4": out.append("  v_xor_b32 v4, 1024, v4"); continue
        if t.startswith("v_and_b32 v5, 31, v0"): skip = True
        if skip and t.startswith("v_lshlrev_b32 v100"): skip = False
        if skip: continue
        out.append(l)
    A.L += out

def part_ops14(grp):
    ops = []
    for t in range(3):
        acc = ACC + 16 * (3 * grp + t)
        for h in range(2):
            o = 208 + 4 * ((2 * t + h) % 6)
            ops.append("\n".join(f"v_cvt_pk_bf16_f32 v{o+x}, v{acc+8*h+2*x}, v{acc+8*h+2*x+1}" for x in range(2)))
            ops.append("\n".join(f"v_cvt_pk_bf16_f32 v{o+x}, v{acc+8*h+2*x}, v{acc+8*h+2*x+1}" for x in range(2, 4)))
            ops.append(f"s_nop 1\nv_permlane32_swap_b32 v{o}, v{o+2}\nv_permlane32_swap_b32 v{o+1}, v{o+3}\nbuffer_store_dwordx4 v[{o}:{o+3}], v{vG}, s[{S_WS}:{S_WS+3}], s47 offen sc0 sc1\ns_add_u32 s47, s47, 1024")
    return ops
G6.part_ops = part_ops14

def gen_mwave7(A, stamp):
    T = Asm(); G6.gen_mwave(T, False)
    txt = "\n".join(T.L)
    m = G6.gemm_stream(1)
    pre = txt[:txt.index("  s_barrier\n  ds_read_b128".replace("  ds_read_b128", "  v_add_u32 v2, s40, v60"))]
    A.L += pre.split("\n")
    A("s_setprio 2\ns_barrier")
    st(A, stamp, 0)
    lines = []
    for k, (mm, v) in enumerate(m):
        if mm == "mark": cur = v
        if mm == "t" and v == "s_barrier" and (cur // 9) % 4 == 3: lines.append(("t", "s_waitcnt vmcnt(0)"))
        lines.append((mm, v))
    emit_loop(A, lines, "L_g1", start=4, period=36, count=8, total=324)
    st(A, stamp, 1)
    A("s_barrier")
    A(f"s_lshl_b32 s46, s31, 12\nv_add_u32 v243, s46, v{vB0}\nv_add_u32 v246, 32768, v243")
    for t in range(9):
        acc = ACC + 16 * t; o = 248
        for x in range(16): A(f"v_mul_f32_e64 v{acc+x}, v{acc+x}, |v{acc+x}|")
        for x in range(8): A(f"v_cvt_pk_bf16_f32 v{o+x}, v{acc+2*x}, v{acc+2*x+1}")
        for x in range(8): A(f"v_pk_max_i16 v{o+x}, v{o+x}, 0")
        for h in range(2):
            if t < 4: A(f"ds_write_b128 v243, v[{o+4*h}:{o+4*h+3}] offset:{t*8192+h*2048}")
            else: A(f"ds_write_b128 v246, v[{o+4*h}:{o+4*h+3}] offset:{(t-4)*8192+h*2048}")
        if t == 3: A("s_barrier")
    A(f"s_lshl_b32 s47, s2, 2\ns_add_u32 s47, s47, s{S_WAVE}\ns_mul_i32 s47, s47, 18432\ns_add_u32 s47, s47, {WS_PART}")
    A(f"s_lshl_b32 s40, s{S_K0}, 11\nv_add_u32 v{vB}, s40, v{vB0}")
    A("s_waitcnt lgkmcnt(0)\ns_barrier")
    A(f"s_cmp_lt_i32 s{S_XC}, 0\ns_cbranch_scc1 L_m_nx\ns_barrier\ns_barrier\ns_barrier\nL_m_nx:")
    st(A, stamp, 2)
    emit_loop(A, G6.gemm_stream(2), "L_g2", 0, 0, 1, 324)
    st(A, stamp, 3)
    A("s_branch L_tail")

def gen_helper7(A, stamp):
    A("L_helper:")
    A(f"s_sub_u32 s{S_HW}, s{S_WAVE}, 4\nv_and_b32 v{VL}, 63, v0\nv_and_b32 v1, 255, v0\ns_mov_b32 s{S_RT2}, {f32bits(0.7071067811865476)}")
    A(f"s_mov_b32 s{S_RT2+1}, s{S_RT2}")
    A("s_lshr_b32 s40, s2, 5\ns_lshl_b32 s40, s40, 3\ns_and_b32 s41, s2, 7\ns_add_u32 s40, s40, s41\ns_lshl_b32 s40, s40, 2\ns_bfe_u32 s41, s2, 0x20003\ns_add_u32 s40, s40, s41")
    slot_decode(A, 40, 98, 61)
    A(f"s_cmp_lt_i32 s{S_XC}, 0\ns_cbranch_scc1 L_nsd\ns_mov_b32 s40, s{S_XC}")
    slot_decode(A, 40, 99, S_XC)
    A("L_nsd:")
    A(f"s_waitcnt lgkmcnt(0)\ns_add_u32 s{S_NONCE}, s{S_NONCE}, 1")
    T0 = Asm(); G6.gen_loader_pre(T0)
    k = T0.L.index("  s_barrier")
    A.L += T0.L[:k]
    A(f"s_cmp_ge_u32 s{S_HW}, 2\ns_cbranch_scc1 L_h_w0")
    FF.fft_setup(A, R, 1, L_F, 56)
    A(f"s_cmp_ge_u32 s{S_J}, 5\ns_cbranch_scc1 L_nowt")
    G6.tw_dma(A)
    A("L_nowt:")
    A("s_call_b64 s[62:63], L_ld1\ns_call_b64 s[62:63], L_ld1")
    A(f"s_cmp_lt_u32 s{S_J}, 5\ns_cbranch_scc1 L_spf\ns_call_b64 s[62:63], L_ld1\ns_branch L_spf1\nL_spf:")
    def spf(nst):
        A(f"v_mov_b32 v232, v{VL}")
        for i in range((72 * nst + 63) // 64):
            divc(A, 9, 233, 234, 232, 235)
            A(f"v_and_b32 v235, 7, v233\nv_lshrrev_b32 v233, 3, v233\nv_lshl_add_u32 v233, v233, 4, v235\nv_mul_u32_u24 v233, 9216, v233\nv_lshl_add_u32 v233, v234, 7, v233")
            A(f"buffer_load_dword v131, v233, s[{S_W1}:{S_W1+3}], s52 offen\nv_add_u32 v232, 64, v232")
    spf(2)
    A("s_branch L_spf2\nL_spf1:")
    spf(1)
    A("L_spf2:")
    A(f"s_cmp_ge_u32 s{S_J}, 5\ns_cbranch_scc1 L_h_c0\ns_waitcnt vmcnt(21)\ns_branch L_h_c0")
    A("L_h_w0:\nL_h_c0:")
    A("s_waitcnt lgkmcnt(0)\ns_barrier")
    A(f"s_cmp_lt_u32 s{S_HW}, 2\ns_cbranch_scc1 L_h_c2")
    A(f"s_sub_u32 s31, s{S_WAVE}, 6")
    A("s_lshr_b32 s40, s2, 5\ns_bfe_u32 s41, s2, 0x30002\ns_lshl_b32 s41, s41, 3\ns_add_u32 s40, s40, s41\ns_and_b32 s41, s2, 3\ns_lshl_b32 s41, s41, 7\ns_add_u32 s40, s40, s41\ns_mul_i32 s40, s40, 578\ns_lshl_b32 s41, s31, 6\ns_add_u32 s40, s40, s41")
    A(f"v_and_b32 v{VX}, 1, v{VL}\nv_mul_u32_u24 v{VX}, {64*578}, v{VX}\nv_and_b32 v{LT}, 62, v{VL}\nv_add_u32 v{VX}, v{VX}, v{LT}")
    for u3 in range(4):
        for q in range(5):
            r_ = 16 + (u3 * 5 + q)
            A(f"buffer_load_ushort v{r_}, v{VX}, s[32:35], s40 offen offset:{128*q}\nbuffer_load_ushort v{r_+20}, v{VX}, s[36:39], s40 offen offset:{128*q}")
        A(f"s_add_u32 s40, s40, {512*578}")
    A("L_h_c2:")
    A(f"s_cmp_ge_u32 s{S_J}, 5\ns_cbranch_scc1 L_h_np0\ns_barrier")
    A(f"s_cmp_ge_u32 s{S_HW}, 2\ns_cbranch_scc1 L_h_np0\ns_call_b64 s[62:63], L_ld1\nL_h_np0:")
    def dma(gemm, tag):
        A(f"s_cbranch_vccz L_sk{tag}\ns_call_b64 s[62:63], L_ld{gemm}\nL_sk{tag}:".replace("s_cbranch_vccz", f"s_cmp_ge_u32 s{S_HW}, 2\ns_cbranch_scc1"))
    A(f"s_cmp_ge_u32 s{S_HW}, 2\ns_cbranch_scc1 L_b0\ns_waitcnt vmcnt(9)\nL_b0:\ns_barrier")
    A(f"s_cmp_ge_u32 s{S_HW}, 2\ns_cbranch_scc1 L_npr\ns_setprio 3\nL_npr:")
    def iv(gemm, tag, extra=None, wait="s_waitcnt vmcnt(9)"):
        dma(gemm, tag)
        if extra: extra()
        if wait: A(wait)
        A("s_barrier")
    A(f"s_cmp_ge_u32 s{S_HW}, 2\ns_cbranch_scc1 L_wk1")
    A("s_mov_b32 s45, 32\nL_hg1:"); G6.ld_stage(A, 1); A("s_waitcnt vmcnt(9)\ns_barrier\ns_sub_u32 s45, s45, 1\ns_cmp_lg_u32 s45, 0\ns_cbranch_scc1 L_hg1\ns_branch L_j32")
    A("L_wk1:")
    A(f"s_mul_i32 s40, s2, 10240\ns_lshl_b32 s41, s31, 10\ns_add_u32 s40, s40, s41\ns_add_u32 s40, s40, {WS_WT}\nv_lshlrev_b32 v{VX}, 4, v{VL}")
    A("s_waitcnt vmcnt(0)")
    for q in range(5):
        for u3 in range(4): A(f"v_lshl_or_b32 v{64+4*q+u3}, v{36+u3*5+q}, 16, v{16+u3*5+q}")
        A(f"buffer_store_dwordx4 v[{64+4*q}:{67+4*q}], v{VX}, s[{S_WS}:{S_WS+3}], s40 offen sc0 sc1\ns_add_u32 s40, s40, 2048")
    A("s_mov_b64 exec, -1\ns_barrier")
    bg = Asm()
    bg.L += g_gen_lines([0], R.POOL)
    bg("s_waitcnt vmcnt(0)\n;BAR\n;BAR\n;NOBAR")
    bg(f"s_cmp_lg_u32 s{S_HW}, 2\ns_cbranch_scc1 L_nb1"); bump_counter(bg, 0, 254); bg("L_nb1:\n;OK")
    bg.L += g_gen_lines([1, 2], R.POOL)
    FF.fft_setup(bg, R, 1, L_F, 56)
    A.L += slice_bars(bg.L, 31, WSL1)
    A("L_j32:")
    def p1():
        A(f"s_cmp_lg_u32 s{S_HW}, 2\ns_cbranch_scc1 L_np1"); poll_counter(A, "L_poll1", 0, R.T); A("L_np1:")
    iv(1, "b32", p1)
    G6.g2_setup(A, 0)
    A("s_waitcnt vmcnt(0)")
    fft_loads(A, 98, R.POOL, 2); w_loads(A, 61)
    A(f"s_cmp_lt_i32 s{S_XC}, 0\ns_cbranch_scc1 L_nx1"); fft_loads(A, 99, XR2, 1); A("L_nx1:")
    iv(2, "b33", wait=None); iv(2, "b34", wait=None); iv(2, "b35", wait=None)
    st(A, stamp, 0)
    A(f"s_cmp_lt_u32 s{S_HW}, 2\ns_cbranch_scc1 L_wl27\ns_waitcnt vmcnt(0)")
    A(f"s_and_b32 s40, s{S_RB}, 15\ns_lshl_b32 s40, s40, 1\ns_add_u32 s40, s40, s31\ns_lshl_b32 s40, s40, 6\nv_add_u32 v{R.T}, s40, v{VL}\ns_mul_i32 s40, s{S_J}, {576*1152}")
    for i in range(3):
        A(f"v_min_u32 v{R.T+1}, 5183, v{R.T}\nv_lshlrev_b32 v{R.T+1}, 7, v{R.T+1}\nbuffer_load_dword v{R.T+2}, v{R.T+1}, s[{S_W2}:{S_W2+3}], s40 offen\nv_add_u32 v{R.T}, 2048, v{R.T}")
    A("L_wl27:\ns_waitcnt vmcnt(27)\ns_mov_b32 s60, 0")
    A("L_fft:")
    for a in range(8):
        p = R.POOL + 2 * a
        A(f"v_and_b32 v{p+1}, 0xffff0000, v{p}\nv_lshlrev_b32 v{p}, 16, v{p}")
    blocks, outs = FF.fft_column_blocks(A, R, S_RT2)
    for nm, b in blocks:
        if nm == "BAR": A("s_barrier")
        else:
            for line in b.L:
                if line.strip() == ";WAITW":
                    A("s_cmp_eq_u32 s60, 0\ns_cbranch_scc1 L_nww\ns_waitcnt vmcnt(0)\nL_nww:")
                    for i in range(8): A(f"v_and_b32 v{R.WP+2*i+1}, 0xffff0000, v{R.WV+i}\nv_lshlrev_b32 v{R.WP+2*i}, 16, v{R.WV+i}")
                else: A.L.append(line)
            if nm == "i2": A(f"s_cmp_ge_u32 s{S_HW}, 2\ns_cbranch_scc1 L_nlw\ns_cmp_eq_u32 s60, 1\ns_cbranch_scc1 L_nlw\ns_waitcnt vmcnt(2)\nL_nlw:")
            if nm == "f4":
                A(f"s_cmp_eq_u32 s60, 1\ns_cbranch_scc1 L_nw2\ns_cmp_lt_i32 s{S_XC}, 0\ns_cbranch_scc1 L_nw2"); w_loads(A, S_XC); A("L_nw2:")
    A(f"s_lshl_b32 s56, s61, 6\ns_add_u32 s56, s56, {WS_Z}")
    for a in range(8):
        A(f"buffer_store_dword v{outs[a]}, v{R.GZ}, s[{S_WS}:{S_WS+3}], s56 offen sc0 sc1")
        if a < 7: A(f"s_add_u32 s56, s56, {16*18496}")
    A(f"s_cmp_eq_u32 s60, 1\ns_cbranch_scc1 L_fftd\ns_cmp_lt_i32 s{S_XC}, 0\ns_cbranch_scc1 L_fftd")
    A(f"s_mov_b32 s61, s{S_XC}\ns_mov_b32 s60, 1")
    for a in range(8): A(f"v_mov_b32 v{R.POOL+2*a}, v{XR2+a}")
    A("s_barrier\ns_branch L_fft\nL_fftd:")
    st(A, stamp, 1)
    A(f"s_cmp_ge_u32 s{S_HW}, 2\ns_cbranch_scc1 L_wk2")
    for grp in range(3):
        if grp: G6.g2_setup(A, grp)
        A(f"s_mov_b32 s45, {9 if grp == 0 else 12}\nL_hl{grp}:"); G6.ld_stage(A, 2)
        A(f"s_waitcnt vmcnt(9)\ns_barrier\ns_sub_u32 s45, s45, 1\ns_cmp_lg_u32 s45, 0\ns_cbranch_scc1 L_hl{grp}")
    A("s_waitcnt vmcnt(0)\ns_barrier\ns_barrier\ns_branch L_tail")
    A("L_wk2:")
    W = Asm()
    W("s_waitcnt vmcnt(0)\n;BAR\n;BAR\n;NOBAR")
    W(f"s_cmp_lg_u32 s{S_HW}, 2\ns_cbranch_scc1 L_nb2"); bump_counter(W, 1, 2); W("L_nb2:\n;OK")
    W.L += g_gen_lines([3, 4], 8)
    pre = slice_bars(W.L, P3_START, WSL1)
    W = Asm()
    W(";NOBAR")
    poll_counter(W, "L_poll2", 1, 2)
    W(f"s_lshl_b32 s40, s{S_RB}, 2\ns_lshr_b32 s41, s{S_J}, 1\ns_add_u32 s40, s40, s41\ns_mul_i32 s40, s40, 18496\ns_add_u32 s40, s40, {WS_Z}\ns_lshl_b32 s41, s31, 6\ns_add_u32 s40, s40, s41")
    W(f"v_lshrrev_b32 v2, 2, v{VL}\nv_lshlrev_b32 v2, 7, v2\nv_and_b32 v3, 3, v{VL}\nv_lshl_add_u32 v2, v3, 4, v2\ns_lshl_b32 s42, s31, 13\ns_add_u32 s42, s42, {L_F}")
    for e in range(8): W(f"s_add_u32 m0, s42, {1024*e}\ns_add_u32 s41, s40, {2048*e}\nbuffer_load_dwordx4 v2, s[{S_WS}:{S_WS+3}], s41 offen lds")
    W(f"v_lshrrev_b32 v3, 5, v{VL}\nv_lshlrev_b32 v3, 10, v3\nv_and_b32 v4, 31, v{VL}\nv_lshl_add_u32 v3, v4, 1, v3\ns_add_u32 s41, s40, {128*128}")
    for i in range(8): W(f"buffer_load_ushort v{8+i}, v3, s[{S_WS}:{S_WS+3}], s41 offen offset:{128*i}")
    W(";OK\n;BAR")
    W(f"v_lshrrev_b32 v2, 5, v{VL}\nv_lshlrev_b32 v2, 3, v2\nv_bfe_u32 v3, v{VL}, 2, 2\nv_add_u32 v2, v2, v3\nv_lshlrev_b32 v2, 6, v2")
    W(f"v_bfe_u32 v3, v{VL}, 4, 1\nv_lshlrev_b32 v3, 5, v3\nv_and_b32 v4, 3, v{VL}\nv_lshlrev_b32 v4, 3, v4\nv_add3_u32 v2, v2, v3, v4\nv_add_u32 v2, s42, v2")
    W(";BAR\n;BAR\ns_waitcnt vmcnt(0)")
    for kap in range(8):
        b_ = 24 + 4 * kap
        W(f"ds_read_b64_tr_b16 v[{b_}:{b_+1}], v2 offset:{kap*1024}\nds_read_b64_tr_b16 v[{b_+2}:{b_+3}], v2 offset:{kap*1024+256}")
        if kap == 4: W("s_waitcnt lgkmcnt(0)")
    for x in range(4): W(f"v_lshl_or_b32 v{56+x}, v{9+2*x}, 16, v{8+2*x}")
    W(f"v_and_b32 v2, 1, v{VL}\nv_cmp_eq_u32 s[58:59], 0, v2\nv_mov_b32 v3, -1.0\nv_mov_b32 v4, 1.0\nv_cndmask_b32 v3, v3, v4, s[58:59]\ns_waitcnt lgkmcnt(0)")
    accs = [8] + [gt_reg(t - 1, 0) for t in range(1, 5)]
    PQr = lambda t: gt_reg(t, 0) + 16
    ADr = lambda t: gt_reg(t, 0) + 24
    def post(t):
        acc = accs[t]
        for rr in range(8): W(f"v_cndmask_b32 v{acc+rr}, v{acc+8+rr}, v{acc+rr}, s[58:59]")
        for rr in range(8): W(f"v_mul_f32 v{PQr(t)+rr}, v3, v{acc+rr}")
        for rr in range(8): W(f"v_add_f32_dpp v{PQr(t)+rr}, v{acc+rr}, v{PQr(t)+rr} quad_perm:[1,0,3,2] row_mask:0xf bank_mask:0xf")
    for t in range(5):
        acc = accs[t]
        for kap in range(9):
            g = gt_reg(t, kap); b_ = 24 + 4 * kap
            c = "0" if kap == 0 else f"v[{acc}:{acc+15}]"
            W(f"v_mfma_f32_32x32x16_bf16 v[{acc}:{acc+15}], v[{g}:{g+3}], v[{b_}:{b_+3}], {c}")
        if t > 0: W("s_nop 2"); post(t - 1)
    W(f"v_bfe_u32 v4, v{VL}, 1, 4\nv_mul_u32_u24 v4, 416, v4\nv_mul_u32_u24 v5, 9216, v2\ns_mul_i32 s56, s31, {RHALF}\nv_add3_u32 v4, v4, v5, s56\nv_add_u32 v4, 9216, v4")
    W(f"v_lshrrev_b32 v5, 5, v{VL}\nv_lshlrev_b32 v5, 4, v5\nv_sub_u32 v6, 0x180, v5\nv_cndmask_b32 v5, v6, v5, s[58:59]\nv_add_u32 v4, v4, v5")
    W("v_mov_b32 v5, -4\nv_mov_b32 v6, 4\nv_cndmask_b32 v5, v5, v6, s[58:59]")
    post(4)
    for t in range(5):
        for rr in range(8): W(f"v_mad_i32_i24 v{ADr(t)+rr}, v5, {8*(rr>>2) + (rr&3)}, v4")
        W("v_lshl_add_u32 v4, v5, 4, v4")
    A.L += pre + slice_bars(W.L, 35 - P3_START, WSL2)
    st(A, stamp, 2)
    for t in range(5):
        for rr in range(8): A(f"ds_write_b32 v{ADr(t)+rr}, v{PQr(t)+rr}")
    st(A, stamp, 3)
    A("s_branch L_tail")
    for gemm in (1, 2):
        A(f"L_ld{gemm}:"); G6.ld_stage(A, gemm); A("s_setpc_b64 s[62:63]")

CODE_PF7 = 5
P3_START = 19
WSL1 = 32
WSL2 = 48
def gen_kernel(name, stamp=False):
    A = Asm()
    A("main_entry:")
    if stamp: A("s_memtime s[92:93]\ns_memrealtime s[94:95]")
    A("s_cmp_ge_u32 s2, 256\ns_cbranch_scc1 L_exit")
    A("s_getpc_b64 s[42:43]\ns_bfe_u32 s40, s2, 0x20003\ns_lshl_b32 s40, s40, 14\nv_subrev_u32 v131, 256, v0\nv_cmp_gt_u32 vcc, 0x80, v131\nv_lshlrev_b32 v131, 7, v131\nv_add_u32 v131, s40, v131\nv_min_u32 v131, CODE_BYTES, v131")
    A("s_and_saveexec_b64 s[44:45], vcc\ns_cbranch_execz L_npf\nglobal_load_dword v131, v131, s[42:43]\nL_npf:\ns_mov_b64 exec, s[44:45]")
    A("s_load_dwordx2 s[4:5], s[0:1], 0\ns_load_dwordx2 s[8:9], s[0:1], 32\ns_load_dwordx2 s[12:13], s[0:1], 48\ns_load_dwordx2 s[16:17], s[0:1], 80")
    A(f"s_load_dwordx2 s[20:21], s[0:1], 40\ns_load_dwordx2 s[32:33], s[0:1], 8\ns_load_dwordx2 s[36:37], s[0:1], 16")
    A(f"s_load_dwordx2 s[{S_OUT}:{S_OUT+1}], s[0:1], 64\ns_load_dwordx2 s[{S_B2}:{S_B2+1}], s[0:1], 56\ns_load_dwordx2 s[{S_DBGP}:{S_DBGP+1}], s[0:1], 72")
    A(f"v_lshrrev_b32 v1, 6, v0\ns_nop 0\nv_readfirstlane_b32 s{S_WAVE}, v1")
    A(f"s_mov_b32 s6, 2359296\ns_mov_b32 s7, 0x00020000\ns_mov_b32 s10, 5308416\ns_mov_b32 s11, 0x00020000\ns_mov_b32 s14, 5308416\ns_mov_b32 s15, 0x00020000")
    A(f"s_mov_b32 s18, {WS_SIZE}\ns_mov_b32 s19, 0x00020000\ns_mov_b32 s22, 9216\ns_mov_b32 s23, 0x00020000")
    A(f"s_mov_b32 s34, {2048*578}\ns_mov_b32 s35, 0x00020000\ns_mov_b32 s38, {2048*578}\ns_mov_b32 s39, 0x00020000")
    A(f"s_mov_b32 s{S_OUT+2}, 2359296\ns_mov_b32 s{S_OUT+3}, 0x00020000\ns_mov_b32 s{S_B2+2}, 1152\ns_mov_b32 s{S_B2+3}, 0x00020000")
    A(f"s_and_b32 s40, s2, 6\ns_bfe_u32 s41, s2, 0x10003\ns_add_u32 s{S_J}, s40, s41")
    A(f"s_and_b32 s40, s2, 1\ns_lshl_b32 s40, s40, 4\ns_lshr_b32 s41, s2, 4\ns_add_u32 s{S_RB}, s40, s41")
    A(f"s_and_b32 s40, s{S_RB}, 15\ns_cmp_ge_u32 s40, 9\ns_cselect_b32 s41, 9, 0\ns_sub_u32 s40, s40, s41\ns_lshl_b32 s{S_K0}, s40, 2")
    A(f"s_mul_i32 s40, s{S_RB}, 3\ns_add_u32 s40, s40, s{S_J}\ns_add_u32 s40, s40, 251\ns_cmp_lt_u32 s40, 296\ns_cselect_b32 s{S_XC}, s40, -1\ns_cmp_lt_u32 s{S_J}, 5\ns_cselect_b32 s{S_XC}, -1, s{S_XC}")
    A("s_waitcnt lgkmcnt(0)")
    A(f"s_load_dword s{S_NONCE}, s[16:17], {WS_E}")
    A(f"s_and_b32 s40, s{S_WAVE}, 6\ns_cmp_eq_u32 s40, 4\ns_cbranch_scc1 L_helper")
    ln_loads8(A)
    ln8(A)
    A(f"s_cmp_ge_u32 s{S_WAVE}, 4\ns_cbranch_scc1 L_helper")
    A(f"s_waitcnt lgkmcnt(0)\ns_add_u32 s{S_NONCE}, s{S_NONCE}, 1")
    gen_mwave7(A, stamp)
    gen_helper7(A, stamp)
    gen_tail(A, stamp)
    A("L_exit:\ns_endpgm\ncode_end:\n.set CODE_BYTES, code_end-main_entry-64")
    return kernel_header(name) + A.text() + kernel_desc(name, 256, 100) + data_section()

if __name__ == "__main__":
    import sys
    stamp = len(sys.argv) > 1
    hdr = open("cdna_kernels/" + NAME + ".s.ref").read().split("; Override")[0]
    src = hdr + f"; @launch grid=(256,1,1) block=(512,1,1) lds={LDS_BYTES}\n" + '.amdgcn_target "amdgcn-amd-amdhsa--gfx950"\n' + gen_kernel(NAME + "_kernel", stamp)
    open("v15.s", "w").write(src)
```

```python
from asmlib import *
import gen6 as G6
from gen6 import *
import gen_fft12 as FF

S_OUT = 64
S_B2 = 68
S_DBGP = 72
S_HW, S_XC, S_RT2 = 30, 28, 96
R = FF.FFTRegs(2)
GB = 132
XR2 = 248
SPIN_MAX = 100000
L_GT = L_H
GTP = 1296
def pq_addr(par, typ): return par * RHALF + 9216 + typ * 9216
STB = 76
def st(A, stamp, n):
    if stamp: A(f"s_memtime s[{STB+2*n}:{STB+1+2*n}]")

WS_PF = 0x200000
WS_AF = 0x70000
def poll_counter(A, name, which, vt):
    A(f"v_lshlrev_b32 v{vt}, 4, v{VL}\ns_mov_b32 s55, 0\ns_mov_b32 s56, {WS_AF + 1024*which}")
    A(f"{name}:\nbuffer_load_dwordx4 v[{vt+2}:{vt+5}], v{vt}, s[{S_WS}:{S_WS+3}], s56 offen sc0 sc1\ns_waitcnt vmcnt(0)")
    A(f"v_xor_b32 v{vt+2}, s{S_NONCE}, v{vt+2}\nv_xor_b32 v{vt+3}, s{S_NONCE}, v{vt+3}\nv_xor_b32 v{vt+4}, s{S_NONCE}, v{vt+4}\nv_xor_b32 v{vt+5}, s{S_NONCE}, v{vt+5}")
    A(f"v_or_b32 v{vt+2}, v{vt+2}, v{vt+3}\nv_or3_b32 v{vt+2}, v{vt+2}, v{vt+4}, v{vt+5}")
    A(f"v_cmp_ne_u32 vcc, 0, v{vt+2}\ns_add_u32 s55, s55, 1\ns_cmp_gt_u32 s55, {SPIN_MAX}\ns_cbranch_scc1 {name}_ok\ns_cmp_eq_u64 vcc, 0\ns_cbranch_scc1 {name}_ok\ns_sleep 4\ns_branch {name}\n{name}_ok:")
def bump_counter(A, which, vt):
    A(f"s_lshl_b32 s55, s2, 2\ns_add_u32 s55, s55, {WS_AF + 1024*which}\nv_mov_b32 v{vt}, 0\nv_mov_b32 v{vt+1}, s{S_NONCE}\ns_mov_b64 exec, 1")
    A(f"buffer_store_dword v{vt+1}, v{vt}, s[{S_WS}:{S_WS+3}], s55 offen sc0 sc1\ns_mov_b64 exec, -1")

def gt_reg(t, kap): return (132 + 36 * t if t < 3 else 60 + 36 * (t - 3)) + 4 * kap
def g_gen_lines(tiles, T):
    A = Asm(); V = T + 8
    A(f"s_and_b32 s56, s{S_J}, 1\ns_mul_i32 s56, s56, 72")
    A(f"v_and_b32 v{T}, 15, v{VL}\nv_add_u32 v{T}, s56, v{T}\nv_cvt_f32_u32 v{T}, v{T}")
    A(f"v_lshrrev_b32 v{T+1}, 5, v{VL}\nv_lshlrev_b32 v{T+1}, 4, v{T+1}\nv_add_u32 v{T+1}, s31, v{T+1}\nv_cvt_f32_u32 v{T+1}, v{T+1}")
    A(f"v_bfe_u32 v{T+2}, v{VL}, 4, 1\nv_cvt_f32_u32 v{T+2}, v{T+2}\nv_mul_f32 v{T+2}, 0.25, v{T+2}")
    for t in tiles:
        A(f"v_add_f32 v{T+3}, {16.0*t}, v{T}\nv_mul_f32 v{T+3}, {1.0/576}, v{T+3}\nv_fma_f32 v{T+4}, v{T+3}, v{T+1}, v{T+2}")
        A(f"v_mul_f32 v{T+6}, 32.0, v{T+3}\nv_cos_f32 v{T+6}, v{T+6}")
        for i in range(8): A(f"v_fmamk_f32 v{V+i}, v{T+3}, {f32bits(float(2*i))}, v{T+4}\nv_fmamk_f32 v{V+8+i}, v{T+3}, {f32bits(float(2*i-32))}, v{T+4}")
        A(f"v_add_f32 v{T+6}, v{T+6}, v{T+6}")
        for i in range(16): A(f"v_cos_f32 v{V+i}, v{V+i}")
        for kap in range(9):
            g = gt_reg(t, kap); cur = V + 8 * (kap % 2); prv = V + 8 * ((kap + 1) % 2)
            if kap == 0:
                A(f"v_cmp_eq_f32 vcc, 0, v{T+1}\nv_mul_f32 v{T+5}, 0.5, v{cur}\ns_nop 0\nv_cndmask_b32 v{T+5}, v{cur}, v{T+5}, vcc")
                A(f"v_cvt_pk_bf16_f32 v{g}, v{T+5}, v{cur+1}")
            else: A(f"v_cvt_pk_bf16_f32 v{g}, v{cur}, v{cur+1}")
            for x in range(1, 4): A(f"v_cvt_pk_bf16_f32 v{g+x}, v{cur+2*x}, v{cur+1+2*x}")
            if kap < 8:
                for i in range(8): A(f"v_fma_f32 v{prv+i}, v{T+6}, v{cur+i}, -v{prv+i}")
    return A.L
def slice_bars(lines, nbar, wsl):
    nb = 0; run = 0; out = []; hold = False
    for l in lines:
        t = l.strip()
        if t == ";BAR": out.append("  s_barrier"); nb += 1; run = 0; continue
        if t == ";NOBAR": hold = True; continue
        if t == ";OK": hold = False; continue
        out.append(l); run += 2 if "v_cos" in t or "v_sin" in t else (8 if "mfma" in t else 1)
        if run >= wsl and not hold:
            out.append("  s_barrier"); nb += 1; run = 0
    assert nb <= nbar, nb
    print("slice: used", nb, "of", nbar)
    return out + ["  s_barrier"] * (nbar - nb)

def slot_decode(A, s_slot, s_x1, s_col):
    A(f"s_mov_b32 s56, 0\ns_mov_b32 s57, s{s_slot}")
    for ty, base in ((1, 76), (2, 152), (3, 224)):
        A(f"s_sub_u32 s58, s{s_slot}, {base}\ns_cmp_ge_u32 s{s_slot}, {base}\ns_cselect_b32 s56, {ty}, s56\ns_cselect_b32 s57, s58, s57")
    A("s_min_u32 s57, s57, 72")
    A("s_cmp_eq_u32 s56, 3\ns_cselect_b32 s58, 1, 0\ns_max_u32 s57, s57, s58")
    A(f"s_mov_b32 s{s_col}, s57\ns_sub_u32 s58, 288, s57\ns_cmp_eq_u32 s56, 1\ns_cselect_b32 s{s_col}, s58, s{s_col}")
    A(f"s_add_u32 s58, s57, 144\ns_cmp_eq_u32 s56, 2\ns_cselect_b32 s{s_col}, s58, s{s_col}\ns_sub_u32 s58, 144, s57\ns_cmp_eq_u32 s56, 3\ns_cselect_b32 s{s_col}, s58, s{s_col}")
    A(f"s_mul_i32 s58, s56, 20\ns_lshr_b32 s59, s57, 2\ns_add_u32 s58, s58, s59\ns_lshl_b32 s58, s58, 15\ns_and_b32 s59, s57, 3\ns_lshl_b32 s59, s59, 2\ns_add_u32 s58, s58, s59\ns_add_u32 s{s_x1}, s58, {WS_X1}")
def fft_loads(A, s_x1, xdst, stride):
    A(f"v_lshlrev_b32 v{R.GX}, 4, v1\ns_mov_b32 s56, s{s_x1}")
    for a in range(8): A(f"buffer_load_dword v{xdst+stride*a}, v{R.GX}, s[{S_WS}:{S_WS+3}], s56 offen\ns_add_u32 s56, s56, 4096")
def w_loads(A, s_col):
    A(f"v_mul_u32_u24 v{R.T}, 10240, v1\ns_lshl_b32 s56, s{s_col}, 5\ns_add_u32 s56, s56, {WS_WT}")
    A(f"buffer_load_dwordx4 v[{R.WV}:{R.WV+3}], v{R.T}, s[{S_WS}:{S_WS+3}], s56 offen\nbuffer_load_dwordx4 v[{R.WV+4}:{R.WV+7}], v{R.T}, s[{S_WS}:{S_WS+3}], s56 offen offset:16")

def dc_sel(A, s0, vals):
    A(f"s_and_b32 s55, s{S_J}, 1\ns_cmp_eq_u32 s55, 0")
    for i, (a, b) in enumerate(vals): A(f"s_cselect_b32 s{s0+i}, {a}, {b}")

def gen_tail(A, stamp):
    A("L_tail:")
    dc_sel(A, 42, [(0, 144), (9, 18), (27, 99)])
    A(f"s_lshl_b32 s40, s{S_RB}, 2\ns_lshr_b32 s41, s{S_J}, 1\ns_add_u32 s40, s40, s41")
    A(f"s_mul_i32 s46, s40, {16*1152}\ns_mul_i32 s47, s40, 18496\ns_add_u32 s47, s47, {WS_Z + 288*64}")
    A(f"s_mov_b32 s48, {f32bits(2.0/(576*2048))}\ns_mov_b32 s49, {f32bits(-1.4426950408889634)}")
    A(f"s_and_b32 s40, s{S_RB}, 15\ns_lshl_b32 s40, s40, 4\ns_lshr_b32 s41, s{S_RB}, 4\ns_add_u32 s40, s40, s41")
    A(f"v_bfe_u32 v2, v240, 1, 1\nv_lshlrev_b32 v2, 3, v2\nv_bfe_u32 v3, v240, 2, 2\nv_lshl_add_u32 v2, v3, 1, v2\nv_add_u32 v2, s40, v2\nv_lshlrev_b32 v2, 9, v2")
    A(f"v_and_b32 v3, 1, v240\nv_lshl_add_u32 v2, v3, 8, v2\ns_lshr_b32 s41, s{S_J}, 2\ns_lshl_b32 s50, s41, 7\ns_add_u32 s50, s50, {WS_PF}")
    A(f"s_mul_i32 s40, s40, 73728\ns_mul_i32 s41, s41, 18432\ns_add_u32 s40, s40, s41\ns_bfe_u32 s41, s{S_J}, 0x10001\ns_lshl_b32 s41, s41, 8\ns_add_u32 s40, s40, s41\ns_add_u32 s51, s40, {WS_PART}")
    A(f"s_mov_b32 s52, s{S_WAVE}\ns_mov_b32 s53, 0")
    A("L_tl:")
    A(f"v_and_b32 v4, 15, v240\nv_lshrrev_b32 v5, 4, v240\ns_lshl_b32 s40, s52, 2\nv_add_u32 v5, s40, v5")
    A(f"v_mov_b32 v7, 0x120\nv_cmp_le_u32 vcc, s43, v5\ns_nop 1\nv_cndmask_b32 v6, 0, 1, vcc\nv_cmp_le_u32 vcc, s44, v5\ns_nop 1\nv_addc_co_u32 v6, vcc, 0, v6, vcc")
    A(f"v_lshlrev_b32 v8, 4, v5\nv_add_u32 v8, s42, v8\nv_mad_u32_u24 v8, v6, v7, v8")
    A(f"buffer_load_dwordx4 v[100:103], v8, s[{S_B2}:{S_B2+3}], 0 offen")
    A(f"v_mul_u32_u24 v9, 1152, v4\nv_add_u32 v115, v8, v9\nbuffer_load_dwordx4 v[104:107], v115, s[{S_X}:{S_X+3}], s46 offen")
    A(f"v_lshlrev_b32 v9, 2, v4\nbuffer_load_dword v108, v9, s[{S_WS}:{S_WS+3}], s47 offen")
    A(f"v_lshrrev_b32 v9, 4, v8\nv_bfe_u32 v10, v9, 2, 1\nv_mul_u32_u24 v10, 36864, v10\nv_lshrrev_b32 v11, 3, v9\nv_lshl_add_u32 v10, v11, 11, v10\nv_and_b32 v11, 3, v9\nv_lshl_add_u32 v10, v11, 9, v10\nv_lshl_add_u32 v114, v4, 4, v10")
    A(f"v_cvt_f32_u32 v6, v5\nv_add_f32 v6, 0.5, v6\nv_mul_f32 v6, {1.0/9}, v6\nv_cvt_u32_f32 v6, v6\nv_mul_u32_u24 v7, 9, v6\nv_sub_u32 v7, v5, v7")
    A(f"v_and_b32 v8, 1, v6\nv_mul_u32_u24 v9, 416, v4\nv_lshl_add_u32 v9, v7, 5, v9\nv_mul_u32_u24 v8, {9216+96}, v8\nv_add_u32 v113, v9, v8")
    A("v_add_u32 v8, 1, v6\nv_and_b32 v8, 2, v8\nv_lshlrev_b32 v8, 30, v8\nv_xor_b32 v112, 1.0, v8")
    A("s_cmp_lg_u32 s53, 0\ns_cbranch_scc1 L_t2")
    A(f"s_cmp_ge_u32 s{S_WAVE}, 4\ns_cbranch_scc1 L_t1")
    A(f"s_lshl_b32 s40, s2, 9\ns_lshl_b32 s41, s{S_WAVE}, 7\ns_add_u32 s40, s40, s41\ns_add_u32 s40, s40, {WS_PF}\nv_mov_b32 v6, s{S_NONCE}\nv_mov_b32 v7, 0")
    A(f"s_waitcnt vmcnt(3)\ns_mov_b64 exec, 1\nbuffer_store_dword v6, v7, s[{S_WS}:{S_WS+3}], s40 offen sc0 sc1\ns_mov_b64 exec, -1")
    A("L_t1:")
    st(A, stamp, 4)
    A(f"s_cmp_lg_u32 s{S_WAVE}, 5\ns_cbranch_scc1 L_t3\ns_mov_b32 s55, 0\ns_mov_b64 exec, 0xffff")
    A(f"L_pf:\nbuffer_load_dword v3, v2, s[{S_WS}:{S_WS+3}], s50 offen sc0 sc1\ns_waitcnt vmcnt(0)")
    A(f"v_cmp_ne_u32 vcc, s{S_NONCE}, v3\ns_add_u32 s55, s55, 1\ns_cmp_gt_u32 s55, {SPIN_MAX}\ns_cbranch_scc1 L_t4\ns_cmp_eq_u64 vcc, 0\ns_cbranch_scc1 L_t4\ns_mov_b64 exec, vcc\ns_sleep 3\ns_branch L_pf")
    A("L_t4:\ns_mov_b64 exec, -1\nL_t3:\ns_waitcnt lgkmcnt(0)\ns_barrier")
    A("L_t2:")
    st(A, stamp, 5)
    for jp in range(8):
        dw = (jp & 1) * 8 + (jp >> 1) * 2
        A(f"s_add_u32 s40, s51, {dw*73728}\nbuffer_load_dwordx4 v[{64+4*jp}:{67+4*jp}], v114, s[{S_WS}:{S_WS+3}], s40 offen")
    A(f"ds_read_b128 v[40:43], v113 offset:{pq_addr(0,0)}\nds_read_b128 v[44:47], v113 offset:{pq_addr(0,0)+16}\nds_read_b128 v[48:51], v113 offset:{pq_addr(1,0)}\nds_read_b128 v[52:55], v113 offset:{pq_addr(1,0)+16}")
    A("s_waitcnt vmcnt(8)")
    for x in range(4): A(f"v_lshlrev_b32 v{32+2*x}, 16, v{100+x}\nv_and_b32 v{33+2*x}, 0xffff0000, v{100+x}\nv_lshlrev_b32 v{16+2*x}, 16, v{104+x}\nv_and_b32 v{17+2*x}, 0xffff0000, v{104+x}")
    A("v_lshlrev_b32 v62, 16, v108\nv_mul_f32 v62, 0.5, v62\ns_waitcnt lgkmcnt(0)")
    for e in range(8):
        A(f"v_fma_f32 v{40+e}, v{48+e}, v112, v{40+e}")
    for e in range(8):
        A(("v_add_f32" if e % 2 == 0 else "v_sub_f32") + f" v{40+e}, v{40+e}, v62")
    for e in range(8): A(f"v_mul_f32 v{40+e}, s48, v{40+e}")
    for jp in range(8):
        A(f"s_waitcnt vmcnt({7-jp})")
        for x in range(4):
            src = 64 + 4 * jp + x; t = 8 + 2 * (x % 2)
            A(f"v_lshlrev_b32 v{t}, 16, v{src}\nv_and_b32 v{t+1}, 0xffff0000, v{src}\nv_pk_add_f32 v[{32+2*x}:{33+2*x}], v[{32+2*x}:{33+2*x}], v[{t}:{t+1}]")
    for e in range(8): A(f"v_mul_f32 v{48+e}, s49, v{32+e}")
    for e in range(8): A(f"v_exp_f32 v{48+e}, v{48+e}")
    for e in range(8): A(f"v_add_f32 v{48+e}, 1.0, v{48+e}")
    for e in range(8): A(f"v_rcp_f32 v{48+e}, v{48+e}")
    for e in range(8): A(f"v_mul_f32 v{40+e}, v{40+e}, v{32+e}")
    for e in range(8): A(f"v_fma_f32 v{16+e}, v{40+e}, v{48+e}, v{16+e}")
    for x in range(4): A(f"v_cvt_pk_bf16_f32 v{56+x}, v{16+2*x}, v{17+2*x}")
    A(f"buffer_store_dwordx4 v[56:59], v115, s[{S_OUT}:{S_OUT+3}], s46 offen")
    A(f"s_cmp_lg_u32 s52, 4\ns_cbranch_scc1 L_f2e\ns_mov_b32 s52, 8\ns_mov_b32 s53, 1\ns_branch L_tl")
    A("L_f2e:")
    A(f"s_or_b32 s40, s2, s{S_WAVE}\ns_cmp_lg_u32 s40, 0\ns_cbranch_scc1 L_noe\nv_mov_b32 v2, s{S_NONCE}\nv_mov_b32 v3, 0\ns_mov_b32 s41, {WS_E}\ns_mov_b64 exec, 1\nbuffer_store_dword v2, v3, s[{S_WS}:{S_WS+3}], s41 offen\ns_mov_b64 exec, -1\nL_noe:")
    if stamp:
        A(f"s_waitcnt vmcnt(0)\ns_memtime s[{STB+14}:{STB+15}]\ns_memrealtime s[74:75]\ns_waitcnt lgkmcnt(0)\ns_sub_u32 s74, s74, s94")
        for i in range(8): A(f"s_sub_u32 s{STB+2*i}, s{STB+2*i}, s92\nv_mov_b32 v{24+i}, s{STB+2*i}")
        A("v_mov_b32 v32, s74\nv_mov_b32 v33, s94")
        A(f"s_lshl_b32 s46, s2, 9\ns_lshl_b32 s47, s{S_WAVE}, 6\ns_add_u32 s46, s46, s47\ns_add_u32 s46, s46, {WS_DBG}\nv_mov_b32 v40, 0\ns_mov_b64 exec, 1")
        A(f"buffer_store_dwordx4 v[24:27], v40, s[{S_WS}:{S_WS+3}], s46 offen\nbuffer_store_dwordx4 v[28:31], v40, s[{S_WS}:{S_WS+3}], s46 offen offset:16\nbuffer_store_dwordx2 v[32:33], v40, s[{S_WS}:{S_WS+3}], s46 offen offset:32")
    A("s_endpgm")

def ln_loads8(A):
    A(f"v_and_b32 v2, 63, v0\nv_lshrrev_b32 v3, 3, v2\nv_mul_u32_u24 v3, 1152, v3\nv_and_b32 v4, 7, v2\nv_lshl_add_u32 v3, v4, 4, v3")
    A(f"s_and_b32 s44, s{S_J}, 1\ns_lshl_b32 s44, s44, 2\ns_xor_b32 s44, s44, s{S_WAVE}")
    A(f"s_lshl_b32 s40, s{S_RB}, 3\ns_add_u32 s41, s40, s44\ns_mul_i32 s41, s41, 9216")
    for i in range(9): A(f"buffer_load_dwordx4 v[{64+4*i}:{67+4*i}], v3, s[{S_X}:{S_X+3}], s41 offen offset:{128*i}")
    A(f"s_mov_b32 s45, 1\ns_cmp_ge_u32 s{S_WAVE}, 2\ns_cbranch_scc1 L_l1\ns_mov_b32 s45, 2\ns_xor_b32 s41, s44, 4\ns_add_u32 s41, s40, s41\ns_mul_i32 s41, s41, 9216")
    for i in range(9): A(f"buffer_load_dwordx4 v[{200+4*i}:{203+4*i}], v3, s[{S_X}:{S_X+3}], s41 offen offset:{128*i}")
    A("L_l1:")
    A(f"s_cmp_ge_u32 s{S_WAVE}, 4\ns_cbranch_scc1 L_l3")
    A(f"v_and_b32 v5, 31, v0\nv_lshlrev_b32 v5, 1, v5\ns_lshr_b32 s40, s{S_WAVE}, 1\ns_lshl_b32 s40, s40, 6\ns_mul_i32 s41, s{S_J}, 1152\ns_add_u32 s40, s40, s41")
    for t in range(9): A(f"buffer_load_ushort v{180+t}, v5, s[{S_MISC}:{S_MISC+3}], s40 offen offset:{128*t}")
    A(f"s_cmp_ge_u32 s{S_WAVE}, 2\ns_cbranch_scc1 L_l4\ns_waitcnt vmcnt(18)\ns_branch L_l2\nL_l3:\ns_waitcnt vmcnt(0)\nL_l4:\ns_waitcnt vmcnt(9)\nL_l2:")
def ln8(A):
    T = Asm(); G6.gen_ln(T, False)
    out = []
    skip = False
    for l in T.L:
        t = l.strip()
        if t in ("s_waitcnt vmcnt(9)", "s_mov_b32 s45, 2"): continue
        if t == f"s_lshl_b32 s40, s{S_WAVE}, 7":
            out += ["  s_lshr_b32 s40, s44, 2", "  s_lshl_b32 s40, s40, 10", "  s_and_b32 s41, s44, 3", "  s_lshl_b32 s41, s41, 7", "  s_add_u32 s40, s40, s41"]
            continue
        if t == "v_add_u32 v3, 1024, v3": out.append("  v_xor_b32 v3, 1024, v3"); continue
        if t == "v_add_u32 v4, 1024, v4": out.append("  v_xor_b32 v4, 1024, v4"); continue
        if t.startswith("v_and_b32 v5, 31, v0"): skip = True
        if skip and t.startswith("v_lshlrev_b32 v100"): skip = False
        if skip: continue
        out.append(l)
    A.L += out

def part_ops14(grp):
    ops = []
    for t in range(3):
        acc = ACC + 16 * (3 * grp + t)
        for h in range(2):
            o = 208 + 4 * ((2 * t + h) % 6)
            ops.append("\n".join(f"v_cvt_pk_bf16_f32 v{o+x}, v{acc+8*h+2*x}, v{acc+8*h+2*x+1}" for x in range(2)))
            ops.append("\n".join(f"v_cvt_pk_bf16_f32 v{o+x}, v{acc+8*h+2*x}, v{acc+8*h+2*x+1}" for x in range(2, 4)))
            ops.append(f"s_nop 1\nv_permlane32_swap_b32 v{o}, v{o+2}\nv_permlane32_swap_b32 v{o+1}, v{o+3}\nbuffer_store_dwordx4 v[{o}:{o+3}], v{vG}, s[{S_WS}:{S_WS+3}], s47 offen sc0 sc1\ns_add_u32 s47, s47, 1024")
    return ops
G6.part_ops = part_ops14

def gen_mwave7(A, stamp):
    T = Asm(); G6.gen_mwave(T, False)
    txt = "\n".join(T.L)
    m = G6.gemm_stream(1)
    pre = txt[:txt.index("  s_barrier\n  ds_read_b128".replace("  ds_read_b128", "  v_add_u32 v2, s40, v60"))]
    A.L += pre.split("\n")
    A("s_setprio 2\ns_barrier")
    st(A, stamp, 0)
    lines = []
    for k, (mm, v) in enumerate(m):
        if mm == "mark": cur = v
        if mm == "t" and v == "s_barrier" and (cur // 9) % 4 == 3: lines.append(("t", "s_waitcnt vmcnt(0)"))
        lines.append((mm, v))
    emit_loop(A, lines, "L_g1", start=4, period=36, count=8, total=324)
    st(A, stamp, 1)
    A("s_barrier")
    A(f"s_lshl_b32 s46, s31, 12\nv_add_u32 v243, s46, v{vB0}\nv_add_u32 v246, 32768, v243")
    for t in range(9):
        acc = ACC + 16 * t; o = 248
        for x in range(16): A(f"v_mul_f32_e64 v{acc+x}, v{acc+x}, |v{acc+x}|")
        for x in range(8): A(f"v_cvt_pk_bf16_f32 v{o+x}, v{acc+2*x}, v{acc+2*x+1}")
        for x in range(8): A(f"v_pk_max_i16 v{o+x}, v{o+x}, 0")
        for h in range(2):
            if t < 4: A(f"ds_write_b128 v243, v[{o+4*h}:{o+4*h+3}] offset:{t*8192+h*2048}")
            else: A(f"ds_write_b128 v246, v[{o+4*h}:{o+4*h+3}] offset:{(t-4)*8192+h*2048}")
        if t == 3: A("s_barrier")
    A(f"s_lshl_b32 s47, s2, 2\ns_add_u32 s47, s47, s{S_WAVE}\ns_mul_i32 s47, s47, 18432\ns_add_u32 s47, s47, {WS_PART}")
    A(f"s_lshl_b32 s40, s{S_K0}, 11\nv_add_u32 v{vB}, s40, v{vB0}")
    A("s_waitcnt lgkmcnt(0)\ns_barrier")
    A(f"s_cmp_lt_i32 s{S_XC}, 0\ns_cbranch_scc1 L_m_nx\ns_barrier\ns_barrier\ns_barrier\nL_m_nx:")
    st(A, stamp, 2)
    emit_loop(A, G6.gemm_stream(2), "L_g2", 0, 0, 1, 324)
    st(A, stamp, 3)
    A("s_branch L_tail")

def gen_helper7(A, stamp):
    A("L_helper:")
    A(f"s_sub_u32 s{S_HW}, s{S_WAVE}, 4\nv_and_b32 v{VL}, 63, v0\nv_and_b32 v1, 255, v0\ns_mov_b32 s{S_RT2}, {f32bits(0.7071067811865476)}")
    A(f"s_mov_b32 s{S_RT2+1}, s{S_RT2}")
    A("s_lshr_b32 s40, s2, 5\ns_lshl_b32 s40, s40, 3\ns_and_b32 s41, s2, 7\ns_add_u32 s40, s40, s41\ns_lshl_b32 s40, s40, 2\ns_bfe_u32 s41, s2, 0x20003\ns_add_u32 s40, s40, s41")
    slot_decode(A, 40, 98, 61)
    A(f"s_cmp_lt_i32 s{S_XC}, 0\ns_cbranch_scc1 L_nsd\ns_mov_b32 s40, s{S_XC}")
    slot_decode(A, 40, 99, S_XC)
    A("L_nsd:")
    A(f"s_waitcnt lgkmcnt(0)\ns_add_u32 s{S_NONCE}, s{S_NONCE}, 1")
    T0 = Asm(); G6.gen_loader_pre(T0)
    k = T0.L.index("  s_barrier")
    A.L += T0.L[:k]
    A(f"s_cmp_ge_u32 s{S_HW}, 2\ns_cbranch_scc1 L_h_w0")
    FF.fft_setup(A, R, 1, L_F, 56)
    A(f"s_cmp_ge_u32 s{S_J}, 5\ns_cbranch_scc1 L_nowt")
    G6.tw_dma(A)
    A("L_nowt:")
    A("s_call_b64 s[62:63], L_ld1\ns_call_b64 s[62:63], L_ld1")
    A(f"s_cmp_lt_u32 s{S_J}, 5\ns_cbranch_scc1 L_spf\ns_call_b64 s[62:63], L_ld1\ns_branch L_spf1\nL_spf:")
    def spf(nst):
        A(f"v_mov_b32 v232, v{VL}")
        for i in range((72 * nst + 63) // 64):
            divc(A, 9, 233, 234, 232, 235)
            A(f"v_and_b32 v235, 7, v233\nv_lshrrev_b32 v233, 3, v233\nv_lshl_add_u32 v233, v233, 4, v235\nv_mul_u32_u24 v233, 9216, v233\nv_lshl_add_u32 v233, v234, 7, v233")
            A(f"buffer_load_dword v131, v233, s[{S_W1}:{S_W1+3}], s52 offen\nv_add_u32 v232, 64, v232")
    spf(2)
    A("s_branch L_spf2\nL_spf1:")
    spf(1)
    A("L_spf2:")
    A(f"s_cmp_ge_u32 s{S_J}, 5\ns_cbranch_scc1 L_h_c0\ns_waitcnt vmcnt(21)\ns_branch L_h_c0")
    A("L_h_w0:\nL_h_c0:")
    A("s_waitcnt lgkmcnt(0)\ns_barrier")
    A(f"s_cmp_ge_u32 s{S_J}, 5\ns_cbranch_scc1 L_h_np0\ns_barrier")
    A(f"s_cmp_ge_u32 s{S_HW}, 2\ns_cbranch_scc1 L_h_np0\ns_call_b64 s[62:63], L_ld1\nL_h_np0:")
    A(f"s_cmp_lt_u32 s{S_HW}, 2\ns_cbranch_scc1 L_h_c2")
    A(f"s_sub_u32 s31, s{S_WAVE}, 6")
    A("s_lshr_b32 s40, s2, 5\ns_bfe_u32 s41, s2, 0x30002\ns_lshl_b32 s41, s41, 3\ns_add_u32 s40, s40, s41\ns_and_b32 s41, s2, 3\ns_lshl_b32 s41, s41, 7\ns_add_u32 s40, s40, s41\ns_mul_i32 s40, s40, 578\ns_lshl_b32 s41, s31, 6\ns_add_u32 s40, s40, s41")
    A(f"v_and_b32 v{VX}, 1, v{VL}\nv_mul_u32_u24 v{VX}, {64*578}, v{VX}\nv_and_b32 v{LT}, 62, v{VL}\nv_add_u32 v{VX}, v{VX}, v{LT}")
    for u3 in range(4):
        for q in range(5):
            r_ = 16 + (u3 * 5 + q)
            A(f"buffer_load_ushort v{r_}, v{VX}, s[32:35], s40 offen offset:{128*q}\nbuffer_load_ushort v{r_+20}, v{VX}, s[36:39], s40 offen offset:{128*q}")
        A(f"s_add_u32 s40, s40, {512*578}")
    A("L_h_c2:")
    def dma(gemm, tag):
        A(f"s_cbranch_vccz L_sk{tag}\ns_call_b64 s[62:63], L_ld{gemm}\nL_sk{tag}:".replace("s_cbranch_vccz", f"s_cmp_ge_u32 s{S_HW}, 2\ns_cbranch_scc1"))
    A(f"s_cmp_ge_u32 s{S_HW}, 2\ns_cbranch_scc1 L_b0\ns_waitcnt vmcnt(9)\nL_b0:\ns_barrier")
    A(f"s_cmp_ge_u32 s{S_HW}, 2\ns_cbranch_scc1 L_npr\ns_setprio 3\nL_npr:")
    def iv(gemm, tag, extra=None, wait="s_waitcnt vmcnt(9)"):
        dma(gemm, tag)
        if extra: extra()
        if wait: A(wait)
        A("s_barrier")
    A(f"s_cmp_ge_u32 s{S_HW}, 2\ns_cbranch_scc1 L_wk1")
    A("s_mov_b32 s45, 32\nL_hg1:"); G6.ld_stage(A, 1); A("s_waitcnt vmcnt(9)\ns_barrier\ns_sub_u32 s45, s45, 1\ns_cmp_lg_u32 s45, 0\ns_cbranch_scc1 L_hg1\ns_branch L_j32")
    A("L_wk1:")
    A(f"s_mul_i32 s40, s2, 10240\ns_lshl_b32 s41, s31, 10\ns_add_u32 s40, s40, s41\ns_add_u32 s40, s40, {WS_WT}\nv_lshlrev_b32 v{VX}, 4, v{VL}")
    A("s_waitcnt vmcnt(0)")
    for q in range(5):
        for u3 in range(4): A(f"v_lshl_or_b32 v{64+4*q+u3}, v{36+u3*5+q}, 16, v{16+u3*5+q}")
        A(f"buffer_store_dwordx4 v[{64+4*q}:{67+4*q}], v{VX}, s[{S_WS}:{S_WS+3}], s40 offen sc0 sc1\ns_add_u32 s40, s40, 2048")
    A("s_mov_b64 exec, -1\ns_barrier")
    bg = Asm()
    bg.L += g_gen_lines([0], R.POOL)
    bg("s_waitcnt vmcnt(0)\n;BAR\n;BAR\n;NOBAR")
    bg(f"s_cmp_lg_u32 s{S_HW}, 2\ns_cbranch_scc1 L_nb1"); bump_counter(bg, 0, 254); bg("L_nb1:\n;OK")
    bg.L += g_gen_lines([1, 2], R.POOL)
    FF.fft_setup(bg, R, 1, L_F, 56)
    A.L += slice_bars(bg.L, 31, WSL1)
    A("L_j32:")
    def p1():
        A(f"s_cmp_lg_u32 s{S_HW}, 2\ns_cbranch_scc1 L_np1"); poll_counter(A, "L_poll1", 0, R.T); A("L_np1:")
    iv(1, "b32", p1)
    G6.g2_setup(A, 0)
    A("s_waitcnt vmcnt(0)")
    fft_loads(A, 98, R.POOL, 2); w_loads(A, 61)
    A(f"s_cmp_lt_i32 s{S_XC}, 0\ns_cbranch_scc1 L_nx1"); fft_loads(A, 99, XR2, 1); A("L_nx1:")
    iv(2, "b33", wait=None); iv(2, "b34", wait=None); iv(2, "b35", wait=None)
    st(A, stamp, 0)
    A(f"s_cmp_lt_u32 s{S_HW}, 2\ns_cbranch_scc1 L_wl27\ns_waitcnt vmcnt(0)")
    A(f"s_and_b32 s40, s{S_RB}, 15\ns_lshl_b32 s40, s40, 1\ns_add_u32 s40, s40, s31\ns_lshl_b32 s40, s40, 6\nv_add_u32 v{R.T}, s40, v{VL}\ns_mul_i32 s40, s{S_J}, {576*1152}")
    for i in range(3):
        A(f"v_min_u32 v{R.T+1}, 5183, v{R.T}\nv_lshlrev_b32 v{R.T+1}, 7, v{R.T+1}\nbuffer_load_dword v{R.T+2}, v{R.T+1}, s[{S_W2}:{S_W2+3}], s40 offen\nv_add_u32 v{R.T}, 2048, v{R.T}")
    A("L_wl27:\ns_waitcnt vmcnt(27)\ns_mov_b32 s60, 0")
    A("L_fft:")
    for a in range(8):
        p = R.POOL + 2 * a
        A(f"v_and_b32 v{p+1}, 0xffff0000, v{p}\nv_lshlrev_b32 v{p}, 16, v{p}")
    blocks, outs = FF.fft_column_blocks(A, R, S_RT2)
    for nm, b in blocks:
        if nm == "BAR": A("s_barrier")
        else:
            for line in b.L:
                if line.strip() == ";WAITW":
                    A("s_cmp_eq_u32 s60, 0\ns_cbranch_scc1 L_nww\ns_waitcnt vmcnt(0)\nL_nww:")
                    for i in range(8): A(f"v_and_b32 v{R.WP+2*i+1}, 0xffff0000, v{R.WV+i}\nv_lshlrev_b32 v{R.WP+2*i}, 16, v{R.WV+i}")
                else: A.L.append(line)
            if nm == "i2": A(f"s_cmp_ge_u32 s{S_HW}, 2\ns_cbranch_scc1 L_nlw\ns_cmp_eq_u32 s60, 1\ns_cbranch_scc1 L_nlw\ns_waitcnt vmcnt(2)\nL_nlw:")
            if nm == "f4":
                A(f"s_cmp_eq_u32 s60, 1\ns_cbranch_scc1 L_nw2\ns_cmp_lt_i32 s{S_XC}, 0\ns_cbranch_scc1 L_nw2"); w_loads(A, S_XC); A("L_nw2:")
    A(f"s_lshl_b32 s56, s61, 6\ns_add_u32 s56, s56, {WS_Z}")
    for a in range(8):
        A(f"buffer_store_dword v{outs[a]}, v{R.GZ}, s[{S_WS}:{S_WS+3}], s56 offen sc0 sc1")
        if a < 7: A(f"s_add_u32 s56, s56, {16*18496}")
    A(f"s_cmp_eq_u32 s60, 1\ns_cbranch_scc1 L_fftd\ns_cmp_lt_i32 s{S_XC}, 0\ns_cbranch_scc1 L_fftd")
    A(f"s_mov_b32 s61, s{S_XC}\ns_mov_b32 s60, 1")
    for a in range(8): A(f"v_mov_b32 v{R.POOL+2*a}, v{XR2+a}")
    A("s_barrier\ns_branch L_fft\nL_fftd:")
    st(A, stamp, 1)
    A(f"s_cmp_ge_u32 s{S_HW}, 2\ns_cbranch_scc1 L_wk2")
    for grp in range(3):
        if grp: G6.g2_setup(A, grp)
        A(f"s_mov_b32 s45, {9 if grp == 0 else 12}\nL_hl{grp}:"); G6.ld_stage(A, 2)
        A(f"s_waitcnt vmcnt(9)\ns_barrier\ns_sub_u32 s45, s45, 1\ns_cmp_lg_u32 s45, 0\ns_cbranch_scc1 L_hl{grp}")
    A("s_waitcnt vmcnt(0)\ns_barrier\ns_barrier\ns_branch L_tail")
    A("L_wk2:")
    W = Asm()
    W("s_waitcnt vmcnt(0)\n;BAR\n;BAR\n;NOBAR")
    W(f"s_cmp_lg_u32 s{S_HW}, 2\ns_cbranch_scc1 L_nb2"); bump_counter(W, 1, 2); W("L_nb2:\n;OK")
    W.L += g_gen_lines([3, 4], 8)
    pre = slice_bars(W.L, P3_START, WSL1)
    W = Asm()
    W(";NOBAR")
    poll_counter(W, "L_poll2", 1, 2)
    W(f"s_lshl_b32 s40, s{S_RB}, 2\ns_lshr_b32 s41, s{S_J}, 1\ns_add_u32 s40, s40, s41\ns_mul_i32 s40, s40, 18496\ns_add_u32 s40, s40, {WS_Z}\ns_lshl_b32 s41, s31, 6\ns_add_u32 s40, s40, s41")
    W(f"v_lshrrev_b32 v2, 2, v{VL}\nv_lshlrev_b32 v2, 7, v2\nv_and_b32 v3, 3, v{VL}\nv_lshl_add_u32 v2, v3, 4, v2\ns_lshl_b32 s42, s31, 13\ns_add_u32 s42, s42, {L_F}")
    for e in range(8): W(f"s_add_u32 m0, s42, {1024*e}\ns_add_u32 s41, s40, {2048*e}\nbuffer_load_dwordx4 v2, s[{S_WS}:{S_WS+3}], s41 offen lds")
    W(f"v_lshrrev_b32 v3, 5, v{VL}\nv_lshlrev_b32 v3, 10, v3\nv_and_b32 v4, 31, v{VL}\nv_lshl_add_u32 v3, v4, 1, v3\ns_add_u32 s41, s40, {128*128}")
    for i in range(8): W(f"buffer_load_ushort v{8+i}, v3, s[{S_WS}:{S_WS+3}], s41 offen offset:{128*i}")
    W(";OK\n;BAR")
    W(f"v_lshrrev_b32 v2, 5, v{VL}\nv_lshlrev_b32 v2, 3, v2\nv_bfe_u32 v3, v{VL}, 2, 2\nv_add_u32 v2, v2, v3\nv_lshlrev_b32 v2, 6, v2")
    W(f"v_bfe_u32 v3, v{VL}, 4, 1\nv_lshlrev_b32 v3, 5, v3\nv_and_b32 v4, 3, v{VL}\nv_lshlrev_b32 v4, 3, v4\nv_add3_u32 v2, v2, v3, v4\nv_add_u32 v2, s42, v2")
    W(";BAR\n;BAR\ns_waitcnt vmcnt(0)")
    for kap in range(8):
        b_ = 24 + 4 * kap
        W(f"ds_read_b64_tr_b16 v[{b_}:{b_+1}], v2 offset:{kap*1024}\nds_read_b64_tr_b16 v[{b_+2}:{b_+3}], v2 offset:{kap*1024+256}")
        if kap == 4: W("s_waitcnt lgkmcnt(0)")
    for x in range(4): W(f"v_lshl_or_b32 v{56+x}, v{9+2*x}, 16, v{8+2*x}")
    W(f"v_and_b32 v2, 1, v{VL}\nv_cmp_eq_u32 s[58:59], 0, v2\nv_mov_b32 v3, -1.0\nv_mov_b32 v4, 1.0\nv_cndmask_b32 v3, v3, v4, s[58:59]\ns_waitcnt lgkmcnt(0)")
    accs = [8] + [gt_reg(t - 1, 0) for t in range(1, 5)]
    PQr = lambda t: gt_reg(t, 0) + 16
    ADr = lambda t: gt_reg(t, 0) + 24
    def post(t):
        acc = accs[t]
        for rr in range(8): W(f"v_cndmask_b32 v{acc+rr}, v{acc+8+rr}, v{acc+rr}, s[58:59]")
        for rr in range(8): W(f"v_mul_f32 v{PQr(t)+rr}, v3, v{acc+rr}")
        for rr in range(8): W(f"v_add_f32_dpp v{PQr(t)+rr}, v{acc+rr}, v{PQr(t)+rr} quad_perm:[1,0,3,2] row_mask:0xf bank_mask:0xf")
    for t in range(5):
        acc = accs[t]
        for kap in range(9):
            g = gt_reg(t, kap); b_ = 24 + 4 * kap
            c = "0" if kap == 0 else f"v[{acc}:{acc+15}]"
            W(f"v_mfma_f32_32x32x16_bf16 v[{acc}:{acc+15}], v[{g}:{g+3}], v[{b_}:{b_+3}], {c}")
        if t > 0: W("s_nop 2"); post(t - 1)
    W(f"v_bfe_u32 v4, v{VL}, 1, 4\nv_mul_u32_u24 v4, 416, v4\nv_mul_u32_u24 v5, 9216, v2\ns_mul_i32 s56, s31, {RHALF}\nv_add3_u32 v4, v4, v5, s56\nv_add_u32 v4, 9216, v4")
    W(f"v_lshrrev_b32 v5, 5, v{VL}\nv_lshlrev_b32 v5, 4, v5\nv_sub_u32 v6, 0x180, v5\nv_cndmask_b32 v5, v6, v5, s[58:59]\nv_add_u32 v4, v4, v5")
    W("v_mov_b32 v5, -4\nv_mov_b32 v6, 4\nv_cndmask_b32 v5, v5, v6, s[58:59]")
    post(4)
    for t in range(5):
        for rr in range(8): W(f"v_mad_i32_i24 v{ADr(t)+rr}, v5, {8*(rr>>2) + (rr&3)}, v4")
        W("v_lshl_add_u32 v4, v5, 4, v4")
    A.L += pre + slice_bars(W.L, 35 - P3_START, WSL2)
    st(A, stamp, 2)
    for t in range(5):
        for rr in range(8): A(f"ds_write_b32 v{ADr(t)+rr}, v{PQr(t)+rr}")
    st(A, stamp, 3)
    A("s_branch L_tail")
    for gemm in (1, 2):
        A(f"L_ld{gemm}:"); G6.ld_stage(A, gemm); A("s_setpc_b64 s[62:63]")

CODE_PF7 = 5
P3_START = 19
WSL1 = 32
WSL2 = 48
def gen_kernel(name, stamp=False):
    A = Asm()
    A("main_entry:")
    if stamp: A("s_memtime s[92:93]\ns_memrealtime s[94:95]")
    A("s_cmp_ge_u32 s2, 256\ns_cbranch_scc1 L_exit")
    A("s_getpc_b64 s[42:43]\ns_bfe_u32 s40, s2, 0x20003\ns_lshl_b32 s40, s40, 14\nv_subrev_u32 v131, 256, v0\nv_cmp_gt_u32 vcc, 0x80, v131\nv_lshlrev_b32 v131, 7, v131\nv_add_u32 v131, s40, v131\nv_min_u32 v131, CODE_BYTES, v131")
    A("s_and_saveexec_b64 s[44:45], vcc\ns_cbranch_execz L_npf\nglobal_load_dword v131, v131, s[42:43]\nL_npf:\ns_mov_b64 exec, s[44:45]")
    A("v_mov_b32 v71, 0\nv_mov_b32 v242, 0\nv_mov_b32 v243, 0\nv_mov_b32 v244, 0\nv_mov_b32 v245, 0\nv_mov_b32 v246, 0\nv_mov_b32 v247, 0\nv_mov_b32 v250, 0\nv_mov_b32 v251, 0\nv_mov_b32 v4, 0")
    A("s_load_dwordx2 s[4:5], s[0:1], 0\ns_load_dwordx2 s[8:9], s[0:1], 32\ns_load_dwordx2 s[12:13], s[0:1], 48\ns_load_dwordx2 s[16:17], s[0:1], 80")
    A(f"s_load_dwordx2 s[20:21], s[0:1], 40\ns_load_dwordx2 s[32:33], s[0:1], 8\ns_load_dwordx2 s[36:37], s[0:1], 16")
    A(f"s_load_dwordx2 s[{S_OUT}:{S_OUT+1}], s[0:1], 64\ns_load_dwordx2 s[{S_B2}:{S_B2+1}], s[0:1], 56\ns_load_dwordx2 s[{S_DBGP}:{S_DBGP+1}], s[0:1], 72")
    A(f"v_lshrrev_b32 v1, 6, v0\ns_nop 0\nv_readfirstlane_b32 s{S_WAVE}, v1")
    A(f"s_mov_b32 s6, 2359296\ns_mov_b32 s7, 0x00020000\ns_mov_b32 s10, 5308416\ns_mov_b32 s11, 0x00020000\ns_mov_b32 s14, 5308416\ns_mov_b32 s15, 0x00020000")
    A(f"s_mov_b32 s18, {WS_SIZE}\ns_mov_b32 s19, 0x00020000\ns_mov_b32 s22, 9216\ns_mov_b32 s23, 0x00020000")
    A(f"s_mov_b32 s34, {2048*578}\ns_mov_b32 s35, 0x00020000\ns_mov_b32 s38, {2048*578}\ns_mov_b32 s39, 0x00020000")
    A(f"s_mov_b32 s{S_OUT+2}, 2359296\ns_mov_b32 s{S_OUT+3}, 0x00020000\ns_mov_b32 s{S_B2+2}, 1152\ns_mov_b32 s{S_B2+3}, 0x00020000")
    A(f"s_and_b32 s40, s2, 6\ns_bfe_u32 s41, s2, 0x10003\ns_add_u32 s{S_J}, s40, s41")
    A(f"s_and_b32 s40, s2, 1\ns_lshl_b32 s40, s40, 4\ns_lshr_b32 s41, s2, 4\ns_add_u32 s{S_RB}, s40, s41")
    A(f"s_and_b32 s40, s{S_RB}, 15\ns_cmp_ge_u32 s40, 9\ns_cselect_b32 s41, 9, 0\ns_sub_u32 s40, s40, s41\ns_lshl_b32 s{S_K0}, s40, 2")
    A(f"s_mul_i32 s40, s{S_RB}, 3\ns_add_u32 s40, s40, s{S_J}\ns_add_u32 s40, s40, 251\ns_cmp_lt_u32 s40, 296\ns_cselect_b32 s{S_XC}, s40, -1\ns_cmp_lt_u32 s{S_J}, 5\ns_cselect_b32 s{S_XC}, -1, s{S_XC}")
    A("s_waitcnt lgkmcnt(0)")
    A(f"s_load_dword s{S_NONCE}, s[16:17], {WS_E}")
    A(f"s_and_b32 s40, s{S_WAVE}, 6\ns_cmp_eq_u32 s40, 4\ns_cbranch_scc1 L_helper")
    ln_loads8(A)
    ln8(A)
    A(f"s_cmp_ge_u32 s{S_WAVE}, 4\ns_cbranch_scc1 L_helper")
    A(f"s_waitcnt lgkmcnt(0)\ns_add_u32 s{S_NONCE}, s{S_NONCE}, 1")
    gen_mwave7(A, stamp)
    gen_helper7(A, stamp)
    gen_tail(A, stamp)
    A("L_exit:\ns_endpgm\ncode_end:\n.set CODE_BYTES, code_end-main_entry-64")
    return kernel_header(name) + A.text() + kernel_desc(name, 256, 100) + data_section()

if __name__ == "__main__":
    import sys
    stamp = len(sys.argv) > 1
    hdr = open("cdna_kernels/" + NAME + ".s.ref").read().split("; Override")[0]
    src = hdr + f"; @launch grid=(256,1,1) block=(512,1,1) lds={LDS_BYTES}\n" + '.amdgcn_target "amdgcn-amd-amdhsa--gfx950"\n' + gen_kernel(NAME + "_kernel", stamp)
    open("v23.s", "w").write(src)
```

```python
from asmlib import *
import gen6 as G6
from gen6 import *
import gen_fft12 as FF

S_OUT = 64
S_B2 = 68
S_DBGP = 72
S_HW, S_XC, S_RT2 = 30, 28, 96
R = FF.FFTRegs(2)
GB = 132
XR2 = 248
SPIN_MAX = 100000
L_GT = L_H
GTP = 1296
def pq_addr(par, typ): return par * RHALF + 9216 + typ * 9216
STB = 76
def st(A, stamp, n):
    if stamp: A(f"s_memtime s[{STB+2*n}:{STB+1+2*n}]")

WS_PF = 0x200000
WS_AF = 0x70000
def poll_counter(A, name, which, vt, split=False):
    A(f"v_lshlrev_b32 v{vt}, 4, v{VL}\ns_mov_b32 s55, 0\ns_mov_b32 s56, {WS_AF + 1024*which}")
    if split:
        A(f"buffer_load_dwordx4 v[{vt+2}:{vt+5}], v{vt}, s[{S_WS}:{S_WS+3}], s56 offen sc0 sc1\ns_barrier\ns_branch {name}_c")
    A(f"{name}:\nbuffer_load_dwordx4 v[{vt+2}:{vt+5}], v{vt}, s[{S_WS}:{S_WS+3}], s56 offen sc0 sc1\n{name}_c:\ns_waitcnt vmcnt(0)")
    A(f"v_xor_b32 v{vt+2}, s{S_NONCE}, v{vt+2}\nv_xor_b32 v{vt+3}, s{S_NONCE}, v{vt+3}\nv_xor_b32 v{vt+4}, s{S_NONCE}, v{vt+4}\nv_xor_b32 v{vt+5}, s{S_NONCE}, v{vt+5}")
    A(f"v_or_b32 v{vt+2}, v{vt+2}, v{vt+3}\nv_or3_b32 v{vt+2}, v{vt+2}, v{vt+4}, v{vt+5}")
    A(f"v_cmp_ne_u32 vcc, 0, v{vt+2}\ns_add_u32 s55, s55, 1\ns_cmp_gt_u32 s55, {SPIN_MAX}\ns_cbranch_scc1 {name}_ok\ns_cmp_eq_u64 vcc, 0\ns_cbranch_scc1 {name}_ok\ns_sleep 8\ns_branch {name}\n{name}_ok:")
    if split: A(f"s_branch {name}_e")

def bump_counter(A, which, vt):
    A(f"s_lshl_b32 s55, s2, 2\ns_add_u32 s55, s55, {WS_AF + 1024*which}\nv_mov_b32 v{vt}, 0\nv_mov_b32 v{vt+1}, s{S_NONCE}\ns_mov_b64 exec, 1")
    A(f"buffer_store_dword v{vt+1}, v{vt}, s[{S_WS}:{S_WS+3}], s55 offen sc0 sc1\ns_mov_b64 exec, -1")

def gt_reg(t, kap): return (132 + 36 * t if t < 3 else 60 + 36 * (t - 3)) + 4 * kap
def g_gen_lines(tiles, T):
    A = Asm(); V = T + 8
    A(f"s_and_b32 s56, s{S_J}, 1\ns_mul_i32 s56, s56, 72")
    A(f"v_and_b32 v{T}, 15, v{VL}\nv_add_u32 v{T}, s56, v{T}\nv_cvt_f32_u32 v{T}, v{T}")
    A(f"v_lshrrev_b32 v{T+1}, 5, v{VL}\nv_lshlrev_b32 v{T+1}, 4, v{T+1}\nv_add_u32 v{T+1}, s31, v{T+1}\nv_cvt_f32_u32 v{T+1}, v{T+1}")
    A(f"v_bfe_u32 v{T+2}, v{VL}, 4, 1\nv_cvt_f32_u32 v{T+2}, v{T+2}\nv_mul_f32 v{T+2}, 0.25, v{T+2}")
    for t in tiles:
        A(f"v_add_f32 v{T+3}, {16.0*t}, v{T}\nv_mul_f32 v{T+3}, {1.0/576}, v{T+3}\nv_fma_f32 v{T+4}, v{T+3}, v{T+1}, v{T+2}")
        A(f"v_mul_f32 v{T+6}, 32.0, v{T+3}\nv_cos_f32 v{T+6}, v{T+6}")
        for i in range(8): A(f"v_fmamk_f32 v{V+i}, v{T+3}, {f32bits(float(2*i))}, v{T+4}\nv_fmamk_f32 v{V+8+i}, v{T+3}, {f32bits(float(2*i-32))}, v{T+4}")
        A(f"v_add_f32 v{T+6}, v{T+6}, v{T+6}")
        for i in range(16): A(f"v_cos_f32 v{V+i}, v{V+i}")
        for kap in range(9):
            g = gt_reg(t, kap); cur = V + 8 * (kap % 2); prv = V + 8 * ((kap + 1) % 2)
            if kap == 0:
                A(f"v_cmp_eq_f32 vcc, 0, v{T+1}\nv_mul_f32 v{T+5}, 0.5, v{cur}\ns_nop 0\nv_cndmask_b32 v{T+5}, v{cur}, v{T+5}, vcc")
                A(f"v_cvt_pk_bf16_f32 v{g}, v{T+5}, v{cur+1}")
            else: A(f"v_cvt_pk_bf16_f32 v{g}, v{cur}, v{cur+1}")
            for x in range(1, 4): A(f"v_cvt_pk_bf16_f32 v{g+x}, v{cur+2*x}, v{cur+1+2*x}")
            if kap < 8:
                for i in range(8): A(f"v_fma_f32 v{prv+i}, v{T+6}, v{cur+i}, -v{prv+i}")
    return A.L
def slice_bars(lines, nbar, wsl):
    nb = 0; run = 0; out = []; hold = False
    for l in lines:
        t = l.strip()
        if t == ";BAR": out.append("  s_barrier"); nb += 1; run = 0; continue
        if t == ";NOBAR": hold = True; continue
        if t == ";OK": hold = False; continue
        out.append(l); run += 2 if "v_cos" in t or "v_sin" in t else (8 if "mfma" in t else 1)
        if run >= wsl and not hold:
            out.append("  s_barrier"); nb += 1; run = 0
    assert nb <= nbar, nb
    print("slice: used", nb, "of", nbar)
    return out + ["  s_barrier"] * (nbar - nb)

def slot_decode(A, s_slot, s_x1, s_col):
    A(f"s_mov_b32 s56, 0\ns_mov_b32 s57, s{s_slot}")
    for ty, base in ((1, 76), (2, 152), (3, 224)):
        A(f"s_sub_u32 s58, s{s_slot}, {base}\ns_cmp_ge_u32 s{s_slot}, {base}\ns_cselect_b32 s56, {ty}, s56\ns_cselect_b32 s57, s58, s57")
    A("s_min_u32 s57, s57, 72")
    A("s_cmp_eq_u32 s56, 3\ns_cselect_b32 s58, 1, 0\ns_max_u32 s57, s57, s58")
    A(f"s_mov_b32 s{s_col}, s57\ns_sub_u32 s58, 288, s57\ns_cmp_eq_u32 s56, 1\ns_cselect_b32 s{s_col}, s58, s{s_col}")
    A(f"s_add_u32 s58, s57, 144\ns_cmp_eq_u32 s56, 2\ns_cselect_b32 s{s_col}, s58, s{s_col}\ns_sub_u32 s58, 144, s57\ns_cmp_eq_u32 s56, 3\ns_cselect_b32 s{s_col}, s58, s{s_col}")
    A(f"s_mul_i32 s58, s56, 20\ns_lshr_b32 s59, s57, 2\ns_add_u32 s58, s58, s59\ns_lshl_b32 s58, s58, 15\ns_and_b32 s59, s57, 3\ns_lshl_b32 s59, s59, 2\ns_add_u32 s58, s58, s59\ns_add_u32 s{s_x1}, s58, {WS_X1}")
def fft_loads(A, s_x1, xdst, stride):
    A(f"v_lshlrev_b32 v{R.GX}, 4, v1\ns_mov_b32 s56, s{s_x1}")
    for a in range(8): A(f"buffer_load_dword v{xdst+stride*a}, v{R.GX}, s[{S_WS}:{S_WS+3}], s56 offen\ns_add_u32 s56, s56, 4096")
def w_loads(A, s_col):
    A(f"v_mul_u32_u24 v{R.T}, 10240, v1\ns_lshl_b32 s56, s{s_col}, 5\ns_add_u32 s56, s56, {WS_WT}")
    A(f"buffer_load_dwordx4 v[{R.WV}:{R.WV+3}], v{R.T}, s[{S_WS}:{S_WS+3}], s56 offen\nbuffer_load_dwordx4 v[{R.WV+4}:{R.WV+7}], v{R.T}, s[{S_WS}:{S_WS+3}], s56 offen offset:16")

def dc_sel(A, s0, vals):
    A(f"s_and_b32 s55, s{S_J}, 1\ns_cmp_eq_u32 s55, 0")
    for i, (a, b) in enumerate(vals): A(f"s_cselect_b32 s{s0+i}, {a}, {b}")

def gen_tail(A, stamp):
    A("L_tail:")
    dc_sel(A, 42, [(0, 144), (9, 18), (27, 99)])
    A(f"s_lshl_b32 s40, s{S_RB}, 2\ns_lshr_b32 s41, s{S_J}, 1\ns_add_u32 s40, s40, s41")
    A(f"s_mul_i32 s46, s40, {16*1152}\ns_mul_i32 s47, s40, 18496\ns_add_u32 s47, s47, {WS_Z + 288*64}")
    A(f"s_mov_b32 s48, {f32bits(2.0/(576*2048))}\ns_mov_b32 s49, {f32bits(-1.4426950408889634)}")
    A(f"s_and_b32 s40, s{S_RB}, 15\ns_lshl_b32 s40, s40, 4\ns_lshr_b32 s41, s{S_RB}, 4\ns_add_u32 s40, s40, s41")
    A(f"v_bfe_u32 v2, v240, 1, 1\nv_lshlrev_b32 v2, 3, v2\nv_bfe_u32 v3, v240, 2, 2\nv_lshl_add_u32 v2, v3, 1, v2\nv_add_u32 v2, s40, v2\nv_lshlrev_b32 v2, 10, v2")
    A(f"v_and_b32 v3, 1, v240\nv_lshl_add_u32 v2, v3, 9, v2\ns_lshr_b32 s41, s{S_J}, 2\ns_lshl_b32 s50, s41, 8\ns_add_u32 s50, s50, {WS_PF}")
    A(f"s_mul_i32 s40, s40, 73728\ns_mul_i32 s41, s41, 18432\ns_add_u32 s40, s40, s41\ns_bfe_u32 s41, s{S_J}, 0x10001\ns_lshl_b32 s41, s41, 8\ns_add_u32 s40, s40, s41\ns_add_u32 s51, s40, {WS_PART}")
    A(f"s_mov_b32 s52, s{S_WAVE}\ns_mov_b32 s53, 0")
    A("L_tl:")
    A(f"v_and_b32 v4, 15, v240\nv_lshrrev_b32 v5, 4, v240\ns_lshl_b32 s40, s52, 2\nv_add_u32 v5, s40, v5")
    A(f"v_mov_b32 v7, 0x120\nv_cmp_le_u32 vcc, s43, v5\ns_nop 1\nv_cndmask_b32 v6, 0, 1, vcc\nv_cmp_le_u32 vcc, s44, v5\ns_nop 1\nv_addc_co_u32 v6, vcc, 0, v6, vcc")
    A(f"v_lshlrev_b32 v8, 4, v5\nv_add_u32 v8, s42, v8\nv_mad_u32_u24 v8, v6, v7, v8")
    A(f"buffer_load_dwordx4 v[100:103], v8, s[{S_B2}:{S_B2+3}], 0 offen")
    A(f"v_mul_u32_u24 v9, 1152, v4\nv_add_u32 v115, v8, v9\nbuffer_load_dwordx4 v[104:107], v115, s[{S_X}:{S_X+3}], s46 offen")
    A(f"v_lshlrev_b32 v9, 2, v4\nbuffer_load_dword v108, v9, s[{S_WS}:{S_WS+3}], s47 offen")
    A(f"v_lshrrev_b32 v9, 4, v8\nv_bfe_u32 v10, v9, 2, 1\nv_mul_u32_u24 v10, 36864, v10\nv_lshrrev_b32 v11, 3, v9\nv_lshl_add_u32 v10, v11, 11, v10\nv_and_b32 v11, 3, v9\nv_lshl_add_u32 v10, v11, 9, v10\nv_lshl_add_u32 v114, v4, 4, v10")
    A(f"v_cvt_f32_u32 v6, v5\nv_add_f32 v6, 0.5, v6\nv_mul_f32 v6, {1.0/9}, v6\nv_cvt_u32_f32 v6, v6\nv_mul_u32_u24 v7, 9, v6\nv_sub_u32 v7, v5, v7")
    A(f"v_and_b32 v8, 1, v6\nv_mul_u32_u24 v9, 416, v4\nv_lshl_add_u32 v9, v7, 5, v9\nv_mul_u32_u24 v8, {9216+96}, v8\nv_add_u32 v113, v9, v8")
    A("v_add_u32 v8, 1, v6\nv_and_b32 v8, 2, v8\nv_lshlrev_b32 v8, 30, v8\nv_xor_b32 v112, 1.0, v8")
    def ploads():
        for jp in range(8):
            dw = (jp & 1) * 8 + (jp >> 1) * 2
            A(f"s_add_u32 s40, s51, {dw*73728}\nbuffer_load_dwordx4 v[{64+4*jp}:{67+4*jp}], v114, s[{S_WS}:{S_WS+3}], s40 offen")
    def poll(nm, off):
        A(f"s_mov_b32 s55, 0\ns_mov_b64 exec, 0xffff")
        A(f"{nm}:\nbuffer_load_dword v3, v2, s[{S_WS}:{S_WS+3}], s50 offen offset:{off} sc0 sc1\ns_waitcnt vmcnt(0)")
        A(f"v_cmp_ne_u32 vcc, s{S_NONCE}, v3\ns_add_u32 s55, s55, 1\ns_cmp_gt_u32 s55, {SPIN_MAX}\ns_cbranch_scc1 {nm}_d\ns_cmp_eq_u64 vcc, 0\ns_cbranch_scc1 {nm}_d\ns_mov_b64 exec, vcc\ns_sleep 3\ns_branch {nm}")
        A(f"{nm}_d:\ns_mov_b64 exec, -1")
    A("s_cmp_lg_u32 s53, 0\ns_cbranch_scc1 L_t2")
    A(f"s_cmp_lg_u32 s{S_WAVE}, 5\ns_cbranch_scc1 L_ta"); poll("L_pa", 128); A("L_ta:")
    A(f"s_cmp_ge_u32 s{S_WAVE}, 6\ns_cbranch_scc1 L_tb\ns_barrier\nL_tb:")
    A(f"s_cmp_ge_u32 s{S_WAVE}, 5\ns_cbranch_scc1 L_t1")
    ploads()
    A(f"s_cmp_ge_u32 s{S_WAVE}, 4\ns_cbranch_scc1 L_t1")
    A(f"s_lshl_b32 s40, s2, 10\ns_lshl_b32 s41, s{S_WAVE}, 8\ns_add_u32 s40, s40, s41\ns_add_u32 s40, s40, {WS_PF}\nv_mov_b32 v6, s{S_NONCE}\nv_mov_b32 v7, 0")
    A(f"s_waitcnt vmcnt(11)\ns_mov_b64 exec, 1\nbuffer_store_dword v6, v7, s[{S_WS}:{S_WS+3}], s40 offen sc0 sc1\ns_mov_b64 exec, -1")
    A("L_t1:")
    st(A, stamp, 4)
    A(f"s_cmp_lg_u32 s{S_WAVE}, 5\ns_cbranch_scc1 L_t3"); poll("L_pf", 0)
    A("L_t3:\ns_waitcnt lgkmcnt(0)\ns_barrier")
    st(A, stamp, 5)
    A(f"s_cmp_lt_u32 s{S_WAVE}, 5\ns_cbranch_scc1 L_t5")
    A("L_t2:")
    ploads()
    A("L_t5:")
    A(f"ds_read_b128 v[40:43], v113 offset:{pq_addr(0,0)}\nds_read_b128 v[44:47], v113 offset:{pq_addr(0,0)+16}\nds_read_b128 v[48:51], v113 offset:{pq_addr(1,0)}\nds_read_b128 v[52:55], v113 offset:{pq_addr(1,0)+16}")
    A("s_waitcnt vmcnt(8)")
    for x in range(4): A(f"v_lshlrev_b32 v{32+2*x}, 16, v{100+x}\nv_and_b32 v{33+2*x}, 0xffff0000, v{100+x}\nv_lshlrev_b32 v{16+2*x}, 16, v{104+x}\nv_and_b32 v{17+2*x}, 0xffff0000, v{104+x}")
    A("v_lshlrev_b32 v62, 16, v108\nv_mul_f32 v62, 0.5, v62\ns_waitcnt lgkmcnt(0)")
    for e in range(8):
        A(f"v_fma_f32 v{40+e}, v{48+e}, v112, v{40+e}")
    for e in range(8):
        A(("v_add_f32" if e % 2 == 0 else "v_sub_f32") + f" v{40+e}, v{40+e}, v62")
    for e in range(8): A(f"v_mul_f32 v{40+e}, s48, v{40+e}")
    for jp in range(8):
        A(f"s_waitcnt vmcnt({7-jp})")
        for x in range(4):
            src = 64 + 4 * jp + x; t = 8 + 2 * (x % 2)
            A(f"v_lshlrev_b32 v{t}, 16, v{src}\nv_and_b32 v{t+1}, 0xffff0000, v{src}\nv_pk_add_f32 v[{32+2*x}:{33+2*x}], v[{32+2*x}:{33+2*x}], v[{t}:{t+1}]")
    for e in range(8): A(f"v_mul_f32 v{48+e}, s49, v{32+e}")
    for e in range(8): A(f"v_exp_f32 v{48+e}, v{48+e}")
    for e in range(8): A(f"v_add_f32 v{48+e}, 1.0, v{48+e}")
    for e in range(8): A(f"v_rcp_f32 v{48+e}, v{48+e}")
    for e in range(8): A(f"v_mul_f32 v{40+e}, v{40+e}, v{32+e}")
    for e in range(8): A(f"v_fma_f32 v{16+e}, v{40+e}, v{48+e}, v{16+e}")
    for x in range(4): A(f"v_cvt_pk_bf16_f32 v{56+x}, v{16+2*x}, v{17+2*x}")
    A(f"buffer_store_dwordx4 v[56:59], v115, s[{S_OUT}:{S_OUT+3}], s46 offen")
    A(f"s_cmp_lg_u32 s52, 4\ns_cbranch_scc1 L_f2e\ns_mov_b32 s52, 8\ns_mov_b32 s53, 1\ns_branch L_tl")
    A("L_f2e:")
    A(f"s_or_b32 s40, s2, s{S_WAVE}\ns_cmp_lg_u32 s40, 0\ns_cbranch_scc1 L_noe\nv_mov_b32 v2, s{S_NONCE}\nv_mov_b32 v3, 0\ns_mov_b32 s41, {WS_E}\ns_mov_b64 exec, 1\nbuffer_store_dword v2, v3, s[{S_WS}:{S_WS+3}], s41 offen\ns_mov_b64 exec, -1\nL_noe:")
    if stamp:
        A(f"s_waitcnt vmcnt(0)\ns_memtime s[{STB+14}:{STB+15}]\ns_memrealtime s[74:75]\ns_waitcnt lgkmcnt(0)\ns_sub_u32 s74, s74, s94")
        for i in range(8): A(f"s_sub_u32 s{STB+2*i}, s{STB+2*i}, s92\nv_mov_b32 v{24+i}, s{STB+2*i}")
        A("v_mov_b32 v32, s74\nv_mov_b32 v33, s94")
        A(f"s_lshl_b32 s46, s2, 9\ns_lshl_b32 s47, s{S_WAVE}, 6\ns_add_u32 s46, s46, s47\ns_add_u32 s46, s46, {WS_DBG}\nv_mov_b32 v40, 0\ns_mov_b64 exec, 1")
        A(f"buffer_store_dwordx4 v[24:27], v40, s[{S_WS}:{S_WS+3}], s46 offen\nbuffer_store_dwordx4 v[28:31], v40, s[{S_WS}:{S_WS+3}], s46 offen offset:16\nbuffer_store_dwordx2 v[32:33], v40, s[{S_WS}:{S_WS+3}], s46 offen offset:32")
    A("s_endpgm")

def ln_loads8(A):
    A(f"v_and_b32 v2, 63, v0\nv_lshrrev_b32 v3, 3, v2\nv_mul_u32_u24 v3, 1152, v3\nv_and_b32 v4, 7, v2\nv_lshl_add_u32 v3, v4, 4, v3")
    A(f"s_and_b32 s44, s{S_J}, 1\ns_lshl_b32 s44, s44, 2\ns_xor_b32 s44, s44, s{S_WAVE}")
    A(f"s_lshl_b32 s40, s{S_RB}, 3\ns_add_u32 s41, s40, s44\ns_mul_i32 s41, s41, 9216")
    for i in range(9): A(f"buffer_load_dwordx4 v[{64+4*i}:{67+4*i}], v3, s[{S_X}:{S_X+3}], s41 offen offset:{128*i}")
    A(f"s_mov_b32 s45, 1\ns_cmp_ge_u32 s{S_WAVE}, 2\ns_cbranch_scc1 L_l1\ns_mov_b32 s45, 2\ns_xor_b32 s41, s44, 4\ns_add_u32 s41, s40, s41\ns_mul_i32 s41, s41, 9216")
    for i in range(9): A(f"buffer_load_dwordx4 v[{200+4*i}:{203+4*i}], v3, s[{S_X}:{S_X+3}], s41 offen offset:{128*i}")
    A("L_l1:")
    A(f"s_cmp_ge_u32 s{S_WAVE}, 4\ns_cbranch_scc1 L_l3")
    A(f"v_and_b32 v5, 31, v0\nv_lshlrev_b32 v5, 1, v5\ns_lshr_b32 s40, s{S_WAVE}, 1\ns_lshl_b32 s40, s40, 6\ns_mul_i32 s41, s{S_J}, 1152\ns_add_u32 s40, s40, s41")
    for t in range(9): A(f"buffer_load_ushort v{180+t}, v5, s[{S_MISC}:{S_MISC+3}], s40 offen offset:{128*t}")
    A(f"s_cmp_ge_u32 s{S_WAVE}, 2\ns_cbranch_scc1 L_l4\ns_waitcnt vmcnt(18)\ns_branch L_l2\nL_l3:\ns_waitcnt vmcnt(0)\nL_l4:\ns_waitcnt vmcnt(9)\nL_l2:")
def ln8(A):
    T = Asm(); G6.gen_ln(T, False)
    out = []
    skip = False
    for l in T.L:
        t = l.strip()
        if t in ("s_waitcnt vmcnt(9)", "s_mov_b32 s45, 2"): continue
        if t == f"s_lshl_b32 s40, s{S_WAVE}, 7":
            out += ["  s_lshr_b32 s40, s44, 2", "  s_lshl_b32 s40, s40, 10", "  s_and_b32 s41, s44, 3", "  s_lshl_b32 s41, s41, 7", "  s_add_u32 s40, s40, s41"]
            continue
        if t == "v_add_u32 v3, 1024, v3": out.append("  v_xor_b32 v3, 1024, v3"); continue
        if t == "v_add_u32 v4, 1024, v4": out.append("  v_xor_b32 v4, 1024, v4"); continue
        if t.startswith("v_and_b32 v5, 31, v0"): skip = True
        if skip and t.startswith("v_lshlrev_b32 v100"): skip = False
        if skip: continue
        out.append(l)
    A.L += out

def part_ops14(grp):
    ops = []
    for t in range(3):
        acc = ACC + 16 * (3 * grp + t)
        for h in range(2):
            o = 208 + 4 * ((2 * t + h) % 6)
            ops.append("\n".join(f"v_cvt_pk_bf16_f32 v{o+x}, v{acc+8*h+2*x}, v{acc+8*h+2*x+1}" for x in range(2)))
            ops.append("\n".join(f"v_cvt_pk_bf16_f32 v{o+x}, v{acc+8*h+2*x}, v{acc+8*h+2*x+1}" for x in range(2, 4)))
            ops.append(f"s_nop 1\nv_permlane32_swap_b32 v{o}, v{o+2}\nv_permlane32_swap_b32 v{o+1}, v{o+3}\nbuffer_store_dwordx4 v[{o}:{o+3}], v{vG}, s[{S_WS}:{S_WS+3}], s47 offen sc0 sc1\ns_add_u32 s47, s47, 1024")
    return ops
G6.part_ops = part_ops14

def gemm2_stream(g0, g1, extra=None, nobar=()):
    lines = []; fifo = Fifo()
    def T(x): lines.append(x)
    G0, G1 = 108 * g0, 108 * g1
    def b_read(kk):
        if kk % 4 == 0: T(f"v_add_u32 v{vB}, s40, v{vB0}")
        nb = BB + 4 * (kk % 4)
        T(f"ds_read_b128 v[{nb}:{nb+3}], v{vB} offset:{(kk % 4) * 2048}"); fifo.push(("b", kk))
    b_read(G0 // 3); b_read(G0 // 3 + 1)
    for g in range(G0, G0 + PD):
        for txt in a_reads(g): T(txt); fifo.push(("f", g))
    pend = []
    for g in range(G0, G1):
        S, i = divmod(g, 9); kk = g // 3
        tgt = g + 1 if i in (0, 2, 4, 6) else (g if i == 8 else None)
        if tgt is not None:
            c = min(fifo.count_after(("f", tgt)), fifo.count_after(("b", tgt // 3)))
            T(f"s_waitcnt lgkmcnt({min(c,15)})")
        b = BUF + 4 * (g % NB); bb = BB + 4 * (kk % 4); acc = ACC + 16 * (3 * (g // 108) + g % 3)
        cc = "0" if kk % 36 == 0 else f"v[{acc}:{acc+15}]"
        T(f"v_mfma_f32_32x32x16_bf16 v[{acc}:{acc+15}], v[{b}:{b+3}], v[{bb}:{bb+3}], {cc}")
        if g + PD < G1:
            for txt in a_reads(g + PD): T(txt); fifo.push(("f", g + PD))
        if g % 3 == 0 and (kk + 2) % 4 == 0: T("s_add_u32 s40, s40, 8192\ns_cmp_eq_u32 s40, 73728\ns_cselect_b32 s40, 0, s40")
        if g % 3 == 1 and (kk + 2) * 3 < G1: b_read(kk + 2)
        if pend and i in (2, 5, 7) and S % 12 >= 2: T(pend.pop(0))
        if extra and (S, i) in extra: T(extra[(S, i)])
        if i == 8 and g != G1 - 1 and S not in nobar: T("s_barrier")
        if g % 108 == 107:
            assert not pend
            pend = part_ops14(g // 108)
    T("s_nop 7\ns_nop 3")
    for p in pend: T(p)
    return lines

def p3_part(W):
    W(f"s_lshl_b32 s40, s{S_RB}, 2\ns_lshr_b32 s41, s{S_J}, 1\ns_add_u32 s40, s40, s41\ns_mul_i32 s40, s40, 18496\ns_add_u32 s40, s40, {WS_Z}\ns_lshl_b32 s41, s31, 6\ns_add_u32 s40, s40, s41")
    W(f"v_lshrrev_b32 v2, 2, v{VL}\nv_lshlrev_b32 v2, 7, v2\nv_and_b32 v3, 3, v{VL}\nv_lshl_add_u32 v2, v3, 4, v2\ns_lshl_b32 s42, s31, 13\ns_add_u32 s42, s42, {L_F}")
    for e in range(8): W(f"s_add_u32 m0, s42, {1024*e}\ns_add_u32 s41, s40, {2048*e}\nbuffer_load_dwordx4 v2, s[{S_WS}:{S_WS+3}], s41 offen lds")
    W(f"v_lshrrev_b32 v3, 5, v{VL}\nv_lshlrev_b32 v3, 10, v3\nv_and_b32 v4, 31, v{VL}\nv_lshl_add_u32 v3, v4, 1, v3\ns_add_u32 s41, s40, {128*128}")
    for i in range(8): W(f"buffer_load_ushort v{8+i}, v3, s[{S_WS}:{S_WS+3}], s41 offen offset:{128*i}")
    W(";OK\n;BAR")
    W(f"v_lshrrev_b32 v2, 5, v{VL}\nv_lshlrev_b32 v2, 3, v2\nv_bfe_u32 v3, v{VL}, 2, 2\nv_add_u32 v2, v2, v3\nv_lshlrev_b32 v2, 6, v2")
    W(f"v_bfe_u32 v3, v{VL}, 4, 1\nv_lshlrev_b32 v3, 5, v3\nv_and_b32 v4, 3, v{VL}\nv_lshlrev_b32 v4, 3, v4\nv_add3_u32 v2, v2, v3, v4\nv_add_u32 v2, s42, v2")
    W(";BAR\ns_waitcnt vmcnt(0)")
    for kap in range(8):
        b_ = 24 + 4 * kap
        W(f"ds_read_b64_tr_b16 v[{b_}:{b_+1}], v2 offset:{kap*1024}\nds_read_b64_tr_b16 v[{b_+2}:{b_+3}], v2 offset:{kap*1024+256}")
        if kap == 4: W("s_waitcnt lgkmcnt(0)")
    for x in range(4): W(f"v_lshl_or_b32 v{56+x}, v{9+2*x}, 16, v{8+2*x}")
    W(f"v_and_b32 v2, 1, v{VL}\nv_cmp_eq_u32 s[58:59], 0, v2\nv_mov_b32 v3, -1.0\nv_mov_b32 v4, 1.0\nv_cndmask_b32 v3, v3, v4, s[58:59]\ns_waitcnt lgkmcnt(0)")
    accs = [8] + [gt_reg(t - 1, 0) for t in range(1, 5)]
    PQr = lambda t: gt_reg(t, 0) + 16
    ADr = lambda t: gt_reg(t, 0) + 24
    def post(t):
        acc = accs[t]
        for rr in range(8): W(f"v_cndmask_b32 v{acc+rr}, v{acc+8+rr}, v{acc+rr}, s[58:59]")
        for rr in range(8): W(f"v_mul_f32 v{PQr(t)+rr}, v3, v{acc+rr}")
        for rr in range(8): W(f"v_add_f32_dpp v{PQr(t)+rr}, v{acc+rr}, v{PQr(t)+rr} quad_perm:[1,0,3,2] row_mask:0xf bank_mask:0xf")
    for t in range(5):
        acc = accs[t]
        for kap in range(9):
            g = gt_reg(t, kap); b_ = 24 + 4 * kap
            c = "0" if kap == 0 else f"v[{acc}:{acc+15}]"
            W(f"v_mfma_f32_32x32x16_bf16 v[{acc}:{acc+15}], v[{g}:{g+3}], v[{b_}:{b_+3}], {c}")
        if t == 1: W(";BAR")
        if t > 0: W("s_nop 2"); post(t - 1)
    W(f"v_bfe_u32 v4, v{VL}, 1, 4\nv_mul_u32_u24 v4, 416, v4\nv_mul_u32_u24 v5, 9216, v2\ns_mul_i32 s56, s31, {RHALF}\nv_add3_u32 v4, v4, v5, s56\nv_add_u32 v4, 9216, v4")
    W(f"v_lshrrev_b32 v5, 5, v{VL}\nv_lshlrev_b32 v5, 4, v5\nv_sub_u32 v6, 0x180, v5\nv_cndmask_b32 v5, v6, v5, s[58:59]\nv_add_u32 v4, v4, v5")
    W("v_mov_b32 v5, -4\nv_mov_b32 v6, 4\nv_cndmask_b32 v5, v5, v6, s[58:59]")
    post(4)
    for t in range(5):
        for rr in range(8): W(f"v_mad_i32_i24 v{ADr(t)+rr}, v5, {8*(rr>>2) + (rr&3)}, v4")
        W("v_lshl_add_u32 v4, v5, 4, v4")

def gen_mwave7(A, stamp):
    T = Asm(); G6.gen_mwave(T, False)
    txt = "\n".join(T.L)
    m = G6.gemm_stream(1)
    pre = txt[:txt.index("  s_barrier\n  ds_read_b128".replace("  ds_read_b128", "  v_add_u32 v2, s40, v60"))]
    A.L += pre.split("\n")
    A("s_setprio 2\ns_barrier")
    st(A, stamp, 0)
    lines = []
    for k, (mm, v) in enumerate(m):
        if mm == "mark": cur = v
        if mm == "t" and v == "s_barrier" and (cur // 9) % 4 == 3: lines.append(("t", "s_waitcnt vmcnt(0)"))
        lines.append((mm, v))
    emit_loop(A, lines, "L_g1", start=4, period=36, count=8, total=324)
    st(A, stamp, 1)
    A("s_barrier")
    A(f"s_lshl_b32 s46, s31, 12\nv_add_u32 v243, s46, v{vB0}\nv_add_u32 v246, 32768, v243")
    for t in range(9):
        acc = ACC + 16 * t; o = 248
        for x in range(16): A(f"v_mul_f32_e64 v{acc+x}, v{acc+x}, |v{acc+x}|")
        for x in range(8): A(f"v_cvt_pk_bf16_f32 v{o+x}, v{acc+2*x}, v{acc+2*x+1}")
        for x in range(8): A(f"v_pk_max_i16 v{o+x}, v{o+x}, 0")
        for h in range(2):
            if t < 4: A(f"ds_write_b128 v243, v[{o+4*h}:{o+4*h+3}] offset:{t*8192+h*2048}")
            else: A(f"ds_write_b128 v246, v[{o+4*h}:{o+4*h+3}] offset:{(t-4)*8192+h*2048}")
        if t == 3: A("s_barrier")
    A(f"s_lshl_b32 s47, s2, 2\ns_add_u32 s47, s47, s{S_WAVE}\ns_mul_i32 s47, s47, 18432\ns_add_u32 s47, s47, {WS_PART}")
    A(f"s_lshl_b32 s40, s{S_K0}, 11\nv_add_u32 v{vB}, s40, v{vB0}")
    A("s_waitcnt lgkmcnt(0)\ns_barrier")
    A(f"s_cmp_lt_i32 s{S_XC}, 0\ns_cbranch_scc1 L_m_nx\ns_barrier\ns_barrier\ns_barrier\nL_m_nx:")
    st(A, stamp, 2)
    efl = (f"s_lshl_b32 s48, s2, 10\ns_lshl_b32 s49, s{S_WAVE}, 8\ns_add_u32 s48, s48, s49\ns_add_u32 s48, s48, {WS_PF}\nv_mov_b32 v232, s{S_NONCE}\nv_mov_b32 v233, 0\n"
           f"s_waitcnt vmcnt(0)\ns_mov_b64 exec, 1\nbuffer_store_dword v232, v233, s[{S_WS}:{S_WS+3}], s48 offen offset:128 sc0 sc1\ns_mov_b64 exec, -1")
    for t in gemm2_stream(0, 3, extra={(33, 4): efl}): A(t)
    st(A, stamp, 3)
    A("s_branch L_tail")

def gen_helper7(A, stamp):
    A("L_helper:")
    A(f"s_sub_u32 s{S_HW}, s{S_WAVE}, 4\nv_and_b32 v{VL}, 63, v0\nv_and_b32 v1, 255, v0\ns_mov_b32 s{S_RT2}, {f32bits(0.7071067811865476)}")
    A(f"s_mov_b32 s{S_RT2+1}, s{S_RT2}")
    A("s_lshr_b32 s40, s2, 5\ns_lshl_b32 s40, s40, 3\ns_and_b32 s41, s2, 7\ns_add_u32 s40, s40, s41\ns_lshl_b32 s40, s40, 2\ns_bfe_u32 s41, s2, 0x20003\ns_add_u32 s40, s40, s41")
    slot_decode(A, 40, 98, 61)
    A(f"s_cmp_lt_i32 s{S_XC}, 0\ns_cbranch_scc1 L_nsd\ns_mov_b32 s40, s{S_XC}")
    slot_decode(A, 40, 99, S_XC)
    A("L_nsd:")
    A(f"s_waitcnt lgkmcnt(0)\ns_add_u32 s{S_NONCE}, s{S_NONCE}, 1")
    T0 = Asm(); G6.gen_loader_pre(T0)
    k = T0.L.index("  s_barrier")
    A.L += T0.L[:k]
    A(f"s_cmp_ge_u32 s{S_HW}, 2\ns_cbranch_scc1 L_h_w0")
    FF.fft_setup(A, R, 1, L_F, 56)
    A(f"s_cmp_ge_u32 s{S_J}, 5\ns_cbranch_scc1 L_nowt")
    G6.tw_dma(A)
    A("L_nowt:")
    A("s_call_b64 s[62:63], L_ld1\ns_call_b64 s[62:63], L_ld1")
    A(f"s_cmp_lt_u32 s{S_J}, 5\ns_cbranch_scc1 L_spf\ns_call_b64 s[62:63], L_ld1\ns_branch L_spf1\nL_spf:")
    def spf(nst):
        A(f"v_mov_b32 v232, v{VL}")
        for i in range((72 * nst + 63) // 64):
            divc(A, 9, 233, 234, 232, 235)
            A(f"v_and_b32 v235, 7, v233\nv_lshrrev_b32 v233, 3, v233\nv_lshl_add_u32 v233, v233, 4, v235\nv_mul_u32_u24 v233, 9216, v233\nv_lshl_add_u32 v233, v234, 7, v233")
            A(f"buffer_load_dword v131, v233, s[{S_W1}:{S_W1+3}], s52 offen\nv_add_u32 v232, 64, v232")
    spf(2)
    A("s_branch L_spf2\nL_spf1:")
    spf(1)
    A("L_spf2:")
    A(f"s_cmp_ge_u32 s{S_J}, 5\ns_cbranch_scc1 L_h_c0\ns_waitcnt vmcnt(21)\ns_branch L_h_c0")
    A("L_h_w0:\nL_h_c0:")
    A("s_waitcnt lgkmcnt(0)\ns_barrier")
    A(f"s_cmp_lt_u32 s{S_HW}, 2\ns_cbranch_scc1 L_h_c2")
    A(f"s_sub_u32 s31, s{S_WAVE}, 6")
    A("s_lshr_b32 s40, s2, 5\ns_bfe_u32 s41, s2, 0x30002\ns_lshl_b32 s41, s41, 3\ns_add_u32 s40, s40, s41\ns_and_b32 s41, s2, 3\ns_lshl_b32 s41, s41, 7\ns_add_u32 s40, s40, s41\ns_mul_i32 s40, s40, 578\ns_lshl_b32 s41, s31, 6\ns_add_u32 s40, s40, s41")
    A(f"v_and_b32 v{VX}, 1, v{VL}\nv_mul_u32_u24 v{VX}, {64*578}, v{VX}\nv_and_b32 v{LT}, 62, v{VL}\nv_add_u32 v{VX}, v{VX}, v{LT}")
    for u3 in range(4):
        for q in range(5):
            r_ = 16 + (u3 * 5 + q)
            A(f"buffer_load_ushort v{r_}, v{VX}, s[32:35], s40 offen offset:{128*q}\nbuffer_load_ushort v{r_+20}, v{VX}, s[36:39], s40 offen offset:{128*q}")
        A(f"s_add_u32 s40, s40, {512*578}")
    A("L_h_c2:")
    A(f"s_cmp_ge_u32 s{S_J}, 5\ns_cbranch_scc1 L_h_np0\ns_barrier")
    A(f"s_cmp_ge_u32 s{S_HW}, 2\ns_cbranch_scc1 L_h_np0\ns_call_b64 s[62:63], L_ld1\nL_h_np0:")
    def dma(gemm, tag):
        A(f"s_cbranch_vccz L_sk{tag}\ns_call_b64 s[62:63], L_ld{gemm}\nL_sk{tag}:".replace("s_cbranch_vccz", f"s_cmp_ge_u32 s{S_HW}, 2\ns_cbranch_scc1"))
    A(f"s_cmp_ge_u32 s{S_HW}, 2\ns_cbranch_scc1 L_b0\ns_waitcnt vmcnt(9)\nL_b0:\ns_barrier")
    A(f"s_cmp_ge_u32 s{S_HW}, 2\ns_cbranch_scc1 L_npr\ns_setprio 3\nL_npr:")
    def iv(gemm, tag, extra=None, wait="s_waitcnt vmcnt(9)"):
        dma(gemm, tag)
        if extra: extra()
        if wait: A(wait)
        A("s_barrier")
    A(f"s_cmp_ge_u32 s{S_HW}, 2\ns_cbranch_scc1 L_wk1")
    A("s_mov_b32 s45, 32\nL_hg1:"); G6.ld_stage(A, 1); A("s_waitcnt vmcnt(9)\ns_barrier\ns_sub_u32 s45, s45, 1\ns_cmp_lg_u32 s45, 0\ns_cbranch_scc1 L_hg1\ns_branch L_j32")
    A("L_wk1:")
    A(f"s_mul_i32 s40, s2, 10240\ns_lshl_b32 s41, s31, 10\ns_add_u32 s40, s40, s41\ns_add_u32 s40, s40, {WS_WT}\nv_lshlrev_b32 v{VX}, 4, v{VL}")
    A("s_waitcnt vmcnt(0)")
    for q in range(5):
        for u3 in range(4): A(f"v_lshl_or_b32 v{64+4*q+u3}, v{36+u3*5+q}, 16, v{16+u3*5+q}")
        A(f"buffer_store_dwordx4 v[{64+4*q}:{67+4*q}], v{VX}, s[{S_WS}:{S_WS+3}], s40 offen sc0 sc1\ns_add_u32 s40, s40, 2048")
    A("s_mov_b64 exec, -1\ns_barrier")
    bg = Asm()
    bg.L += g_gen_lines([0], R.POOL)
    bg("s_waitcnt vmcnt(0)\n;BAR\n;BAR\n;NOBAR")
    bg(f"s_cmp_lg_u32 s{S_HW}, 2\ns_cbranch_scc1 L_nb1"); bump_counter(bg, 0, 254); bg("L_nb1:\n;OK")
    bg.L += g_gen_lines([1, 2], R.POOL)
    FF.fft_setup(bg, R, 1, L_F, 56)
    A.L += slice_bars(bg.L, 31, WSL1)
    A("L_j32:")
    def p1():
        A(f"s_cmp_lg_u32 s{S_HW}, 2\ns_cbranch_scc1 L_np1"); poll_counter(A, "L_poll1", 0, R.T); A("L_np1:")
    iv(1, "b32", p1)
    G6.g2_setup(A, 0)
    A("s_waitcnt vmcnt(0)")
    fft_loads(A, 98, R.POOL, 2); w_loads(A, 61)
    A(f"s_cmp_lt_i32 s{S_XC}, 0\ns_cbranch_scc1 L_nx1"); fft_loads(A, 99, XR2, 1); A("L_nx1:")
    iv(2, "b33", wait=None); iv(2, "b34", wait=None); iv(2, "b35", wait=None)
    st(A, stamp, 0)
    A(f"s_cmp_lt_u32 s{S_HW}, 2\ns_cbranch_scc1 L_wl27\ns_waitcnt vmcnt(0)")
    A(f"s_and_b32 s40, s{S_RB}, 15\ns_lshl_b32 s40, s40, 1\ns_add_u32 s40, s40, s31\ns_lshl_b32 s40, s40, 6\nv_add_u32 v{R.T}, s40, v{VL}\ns_mul_i32 s40, s{S_J}, {576*1152}")
    for i in range(3):
        A(f"v_min_u32 v{R.T+1}, 5183, v{R.T}\nv_lshlrev_b32 v{R.T+1}, 7, v{R.T+1}\nbuffer_load_dword v{R.T+2}, v{R.T+1}, s[{S_W2}:{S_W2+3}], s40 offen\nv_add_u32 v{R.T}, 2048, v{R.T}")
    A("L_wl27:\ns_waitcnt vmcnt(27)\ns_mov_b32 s60, 0")
    A("L_fft:")
    for a in range(8):
        p = R.POOL + 2 * a
        A(f"v_and_b32 v{p+1}, 0xffff0000, v{p}\nv_lshlrev_b32 v{p}, 16, v{p}")
    blocks, outs = FF.fft_column_blocks(A, R, S_RT2)
    for nm, b in blocks:
        if nm == "BAR": A("s_barrier")
        else:
            for line in b.L:
                if line.strip() == ";WAITW":
                    A("s_cmp_eq_u32 s60, 0\ns_cbranch_scc1 L_nww\ns_waitcnt vmcnt(0)\nL_nww:")
                    for i in range(8): A(f"v_and_b32 v{R.WP+2*i+1}, 0xffff0000, v{R.WV+i}\nv_lshlrev_b32 v{R.WP+2*i}, 16, v{R.WV+i}")
                else: A.L.append(line)
            if nm == "i2": A(f"s_cmp_ge_u32 s{S_HW}, 2\ns_cbranch_scc1 L_nlw\ns_cmp_eq_u32 s60, 1\ns_cbranch_scc1 L_nlw\ns_waitcnt vmcnt(2)\nL_nlw:")
            if nm == "f4":
                A(f"s_cmp_eq_u32 s60, 1\ns_cbranch_scc1 L_nw2\ns_cmp_lt_i32 s{S_XC}, 0\ns_cbranch_scc1 L_nw2"); w_loads(A, S_XC); A("L_nw2:")
    A(f"s_lshl_b32 s56, s61, 6\ns_add_u32 s56, s56, {WS_Z}")
    for a in range(8):
        A(f"buffer_store_dword v{outs[a]}, v{R.GZ}, s[{S_WS}:{S_WS+3}], s56 offen sc0 sc1")
        if a < 7: A(f"s_add_u32 s56, s56, {16*18496}")
    A(f"s_cmp_eq_u32 s60, 1\ns_cbranch_scc1 L_fftd\ns_cmp_lt_i32 s{S_XC}, 0\ns_cbranch_scc1 L_fftd")
    A(f"s_mov_b32 s61, s{S_XC}\ns_mov_b32 s60, 1")
    for a in range(8): A(f"v_mov_b32 v{R.POOL+2*a}, v{XR2+a}")
    A("s_barrier\ns_branch L_fft\nL_fftd:")
    st(A, stamp, 1)
    A(f"s_cmp_ge_u32 s{S_HW}, 2\ns_cbranch_scc1 L_wk2")
    for grp in range(3):
        if grp: G6.g2_setup(A, grp)
        A(f"s_mov_b32 s45, {9 if grp == 0 else 12}\nL_hl{grp}:"); G6.ld_stage(A, 2)
        A(f"s_waitcnt vmcnt(9)\ns_barrier\ns_sub_u32 s45, s45, 1\ns_cmp_lg_u32 s45, 0\ns_cbranch_scc1 L_hl{grp}")
    A("s_waitcnt vmcnt(0)\ns_barrier\ns_barrier\ns_branch L_tail")
    A("L_wk2:")
    W = Asm()
    W("s_waitcnt vmcnt(0)\n;BAR\n;BAR\n;NOBAR")
    W(f"s_cmp_lg_u32 s{S_HW}, 2\ns_cbranch_scc1 L_nb2"); bump_counter(W, 1, 2); W("L_nb2:\n;OK")
    W.L += g_gen_lines([3, 4], 8)
    A.L += slice_bars(W.L, 31, WSL1)
    A(f"s_cmp_lg_u32 s{S_HW}, 2\ns_cbranch_scc1 L_np2"); poll_counter(A, "L_poll2", 1, 2, split=True); A("L_np2:\ns_barrier\nL_poll2_e:")
    A("s_barrier")
    W = Asm(); p3_part(W)
    nb = 0
    for l in W.L:
        t = l.strip()
        if t == ";BAR": A("s_barrier"); nb += 1
        elif not t.startswith(";"): A.L.append(l)
    assert nb == 3
    st(A, stamp, 2)
    for t in range(5):
        for rr in range(8): A(f"ds_write_b32 v{gt_reg(t,0)+24+rr}, v{gt_reg(t,0)+16+rr}")
    st(A, stamp, 3)
    A("s_branch L_tail")
    for gemm in (1, 2):
        A(f"L_ld{gemm}:"); G6.ld_stage(A, gemm); A("s_setpc_b64 s[62:63]")

CODE_PF7 = 5
P3_START = 19
WSL1 = 32
WSL2 = 48
def gen_kernel(name, stamp=False):
    A = Asm()
    A("main_entry:")
    if stamp: A("s_memtime s[92:93]\ns_memrealtime s[94:95]")
    A("s_cmp_ge_u32 s2, 256\ns_cbranch_scc1 L_exit")
    A("s_getpc_b64 s[42:43]\ns_bfe_u32 s40, s2, 0x20003\ns_lshl_b32 s40, s40, 14\nv_subrev_u32 v131, 256, v0\nv_cmp_gt_u32 vcc, 0x80, v131\nv_lshlrev_b32 v131, 7, v131\nv_add_u32 v131, s40, v131\nv_min_u32 v131, CODE_BYTES, v131")
    A("s_and_saveexec_b64 s[44:45], vcc\ns_cbranch_execz L_npf\nglobal_load_dword v131, v131, s[42:43]\nL_npf:\ns_mov_b64 exec, s[44:45]")
    A("v_mov_b32 v71, 0\nv_mov_b32 v242, 0\nv_mov_b32 v243, 0\nv_mov_b32 v244, 0\nv_mov_b32 v245, 0\nv_mov_b32 v246, 0\nv_mov_b32 v247, 0\nv_mov_b32 v250, 0\nv_mov_b32 v251, 0\nv_mov_b32 v4, 0")
    A("s_load_dwordx2 s[4:5], s[0:1], 0\ns_load_dwordx2 s[8:9], s[0:1], 32\ns_load_dwordx2 s[12:13], s[0:1], 48\ns_load_dwordx2 s[16:17], s[0:1], 80")
    A(f"s_load_dwordx2 s[20:21], s[0:1], 40\ns_load_dwordx2 s[32:33], s[0:1], 8\ns_load_dwordx2 s[36:37], s[0:1], 16")
    A(f"s_load_dwordx2 s[{S_OUT}:{S_OUT+1}], s[0:1], 64\ns_load_dwordx2 s[{S_B2}:{S_B2+1}], s[0:1], 56\ns_load_dwordx2 s[{S_DBGP}:{S_DBGP+1}], s[0:1], 72")
    A(f"v_lshrrev_b32 v1, 6, v0\ns_nop 0\nv_readfirstlane_b32 s{S_WAVE}, v1")
    A(f"s_mov_b32 s6, 2359296\ns_mov_b32 s7, 0x00020000\ns_mov_b32 s10, 5308416\ns_mov_b32 s11, 0x00020000\ns_mov_b32 s14, 5308416\ns_mov_b32 s15, 0x00020000")
    A(f"s_mov_b32 s18, {WS_SIZE}\ns_mov_b32 s19, 0x00020000\ns_mov_b32 s22, 9216\ns_mov_b32 s23, 0x00020000")
    A(f"s_mov_b32 s34, {2048*578}\ns_mov_b32 s35, 0x00020000\ns_mov_b32 s38, {2048*578}\ns_mov_b32 s39, 0x00020000")
    A(f"s_mov_b32 s{S_OUT+2}, 2359296\ns_mov_b32 s{S_OUT+3}, 0x00020000\ns_mov_b32 s{S_B2+2}, 1152\ns_mov_b32 s{S_B2+3}, 0x00020000")
    A(f"s_and_b32 s40, s2, 6\ns_bfe_u32 s41, s2, 0x10003\ns_add_u32 s{S_J}, s40, s41")
    A(f"s_and_b32 s40, s2, 1\ns_lshl_b32 s40, s40, 4\ns_lshr_b32 s41, s2, 4\ns_add_u32 s{S_RB}, s40, s41")
    A(f"s_and_b32 s40, s{S_RB}, 15\ns_cmp_ge_u32 s40, 9\ns_cselect_b32 s41, 9, 0\ns_sub_u32 s40, s40, s41\ns_lshl_b32 s{S_K0}, s40, 2")
    A(f"s_mul_i32 s40, s{S_RB}, 3\ns_add_u32 s40, s40, s{S_J}\ns_add_u32 s40, s40, 251\ns_cmp_lt_u32 s40, 296\ns_cselect_b32 s{S_XC}, s40, -1\ns_cmp_lt_u32 s{S_J}, 5\ns_cselect_b32 s{S_XC}, -1, s{S_XC}")
    A("s_waitcnt lgkmcnt(0)")
    A(f"s_load_dword s{S_NONCE}, s[16:17], {WS_E}")
    A(f"s_and_b32 s40, s{S_WAVE}, 6\ns_cmp_eq_u32 s40, 4\ns_cbranch_scc1 L_helper")
    ln_loads8(A)
    ln8(A)
    A(f"s_cmp_ge_u32 s{S_WAVE}, 4\ns_cbranch_scc1 L_helper")
    A(f"s_waitcnt lgkmcnt(0)\ns_add_u32 s{S_NONCE}, s{S_NONCE}, 1")
    gen_mwave7(A, stamp)
    gen_helper7(A, stamp)
    gen_tail(A, stamp)
    A("L_exit:\ns_endpgm\ncode_end:\n.set CODE_BYTES, code_end-main_entry-64")
    return kernel_header(name) + A.text() + kernel_desc(name, 256, 100) + data_section()

if __name__ == "__main__":
    import sys
    stamp = len(sys.argv) > 1
    hdr = open("cdna_kernels/" + NAME + ".s.ref").read().split("; Override")[0]
    src = hdr + f"; @launch grid=(256,1,1) block=(512,1,1) lds={LDS_BYTES}\n" + '.amdgcn_target "amdgcn-amd-amdhsa--gfx950"\n' + gen_kernel(NAME + "_kernel", stamp)
    open("v21.s", "w").write(src)
```

```python
from asmlib import *
import gen6 as G6
from gen6 import *
import gen_fft12 as FF

S_OUT = 64
S_B2 = 68
S_DBGP = 72
S_HW, S_XC, S_RT2 = 30, 28, 96
R = FF.FFTRegs(2)
GB = 132
XR2 = 248
SPIN_MAX = 100000
L_GT = L_H
GTP = 1296
def pq_addr(par, typ): return par * RHALF + 9216 + typ * 9216
STB = 76
def st(A, stamp, n):
    if stamp: A(f"s_memtime s[{STB+2*n}:{STB+1+2*n}]")

WS_PF = 0x200000
WS_AF = 0x70000
def poll_counter(A, name, which, vt):
    A(f"v_lshlrev_b32 v{vt}, 4, v{VL}\ns_mov_b32 s55, 0\ns_mov_b32 s56, {WS_AF + 1024*which}")
    A(f"{name}:\nbuffer_load_dwordx4 v[{vt+2}:{vt+5}], v{vt}, s[{S_WS}:{S_WS+3}], s56 offen sc0 sc1\ns_waitcnt vmcnt(0)")
    A(f"v_xor_b32 v{vt+2}, s{S_NONCE}, v{vt+2}\nv_xor_b32 v{vt+3}, s{S_NONCE}, v{vt+3}\nv_xor_b32 v{vt+4}, s{S_NONCE}, v{vt+4}\nv_xor_b32 v{vt+5}, s{S_NONCE}, v{vt+5}")
    A(f"v_or_b32 v{vt+2}, v{vt+2}, v{vt+3}\nv_or3_b32 v{vt+2}, v{vt+2}, v{vt+4}, v{vt+5}")
    A(f"v_cmp_ne_u32 vcc, 0, v{vt+2}\ns_add_u32 s55, s55, 1\ns_cmp_gt_u32 s55, {SPIN_MAX}\ns_cbranch_scc1 {name}_ok\ns_cmp_eq_u64 vcc, 0\ns_cbranch_scc1 {name}_ok\ns_sleep 4\ns_branch {name}\n{name}_ok:")
def bump_counter(A, which, vt):
    A(f"s_lshl_b32 s55, s2, 2\ns_add_u32 s55, s55, {WS_AF + 1024*which}\nv_mov_b32 v{vt}, 0\nv_mov_b32 v{vt+1}, s{S_NONCE}\ns_mov_b64 exec, 1")
    A(f"buffer_store_dword v{vt+1}, v{vt}, s[{S_WS}:{S_WS+3}], s55 offen sc0 sc1\ns_mov_b64 exec, -1")

def gt_reg(t, kap): return (132 + 36 * t if t < 3 else 60 + 36 * (t - 3)) + 4 * kap
def g_gen_lines(tiles, T):
    A = Asm(); V = T + 8
    A(f"s_and_b32 s56, s{S_J}, 1\ns_mul_i32 s56, s56, 72")
    A(f"v_and_b32 v{T}, 15, v{VL}\nv_add_u32 v{T}, s56, v{T}\nv_cvt_f32_u32 v{T}, v{T}")
    A(f"v_lshrrev_b32 v{T+1}, 5, v{VL}\nv_lshlrev_b32 v{T+1}, 4, v{T+1}\nv_add_u32 v{T+1}, s31, v{T+1}\nv_cvt_f32_u32 v{T+1}, v{T+1}")
    A(f"v_bfe_u32 v{T+2}, v{VL}, 4, 1\nv_cvt_f32_u32 v{T+2}, v{T+2}\nv_mul_f32 v{T+2}, 0.25, v{T+2}")
    for t in tiles:
        A(f"v_add_f32 v{T+3}, {16.0*t}, v{T}\nv_mul_f32 v{T+3}, {1.0/576}, v{T+3}\nv_fma_f32 v{T+4}, v{T+3}, v{T+1}, v{T+2}")
        A(f"v_mul_f32 v{T+6}, 32.0, v{T+3}\nv_cos_f32 v{T+6}, v{T+6}")
        for i in range(8): A(f"v_fmamk_f32 v{V+i}, v{T+3}, {f32bits(float(2*i))}, v{T+4}\nv_fmamk_f32 v{V+8+i}, v{T+3}, {f32bits(float(2*i-32))}, v{T+4}")
        A(f"v_add_f32 v{T+6}, v{T+6}, v{T+6}")
        for i in range(16): A(f"v_cos_f32 v{V+i}, v{V+i}")
        for kap in range(9):
            g = gt_reg(t, kap); cur = V + 8 * (kap % 2); prv = V + 8 * ((kap + 1) % 2)
            if kap == 0:
                A(f"v_cmp_eq_f32 vcc, 0, v{T+1}\nv_mul_f32 v{T+5}, 0.5, v{cur}\ns_nop 0\nv_cndmask_b32 v{T+5}, v{cur}, v{T+5}, vcc")
                A(f"v_cvt_pk_bf16_f32 v{g}, v{T+5}, v{cur+1}")
            else: A(f"v_cvt_pk_bf16_f32 v{g}, v{cur}, v{cur+1}")
            for x in range(1, 4): A(f"v_cvt_pk_bf16_f32 v{g+x}, v{cur+2*x}, v{cur+1+2*x}")
            if kap < 8:
                for i in range(8): A(f"v_fma_f32 v{prv+i}, v{T+6}, v{cur+i}, -v{prv+i}")
    return A.L
def slice_bars(lines, nbar, wsl):
    nb = 0; run = 0; out = []; hold = False
    for l in lines:
        t = l.strip()
        if t == ";BAR": out.append("  s_barrier"); nb += 1; run = 0; continue
        if t == ";NOBAR": hold = True; continue
        if t == ";OK": hold = False; continue
        out.append(l); run += 2 if "v_cos" in t or "v_sin" in t else (8 if "mfma" in t else 1)
        if run >= wsl and not hold:
            out.append("  s_barrier"); nb += 1; run = 0
    assert nb <= nbar, nb
    print("slice: used", nb, "of", nbar)
    return out + ["  s_barrier"] * (nbar - nb)

def slot_decode(A, s_slot, s_x1, s_col):
    A(f"s_mov_b32 s56, 0\ns_mov_b32 s57, s{s_slot}")
    for ty, base in ((1, 76), (2, 152), (3, 224)):
        A(f"s_sub_u32 s58, s{s_slot}, {base}\ns_cmp_ge_u32 s{s_slot}, {base}\ns_cselect_b32 s56, {ty}, s56\ns_cselect_b32 s57, s58, s57")
    A("s_min_u32 s57, s57, 72")
    A("s_cmp_eq_u32 s56, 3\ns_cselect_b32 s58, 1, 0\ns_max_u32 s57, s57, s58")
    A(f"s_mov_b32 s{s_col}, s57\ns_sub_u32 s58, 288, s57\ns_cmp_eq_u32 s56, 1\ns_cselect_b32 s{s_col}, s58, s{s_col}")
    A(f"s_add_u32 s58, s57, 144\ns_cmp_eq_u32 s56, 2\ns_cselect_b32 s{s_col}, s58, s{s_col}\ns_sub_u32 s58, 144, s57\ns_cmp_eq_u32 s56, 3\ns_cselect_b32 s{s_col}, s58, s{s_col}")
    A(f"s_mul_i32 s58, s56, 20\ns_lshr_b32 s59, s57, 2\ns_add_u32 s58, s58, s59\ns_lshl_b32 s58, s58, 15\ns_and_b32 s59, s57, 3\ns_lshl_b32 s59, s59, 2\ns_add_u32 s58, s58, s59\ns_add_u32 s{s_x1}, s58, {WS_X1}")
def fft_loads(A, s_x1, xdst, stride):
    A(f"v_lshlrev_b32 v{R.GX}, 4, v1\ns_mov_b32 s56, s{s_x1}")
    for a in range(8): A(f"buffer_load_dword v{xdst+stride*a}, v{R.GX}, s[{S_WS}:{S_WS+3}], s56 offen\ns_add_u32 s56, s56, 4096")
def w_loads(A, s_col):
    A(f"v_mul_u32_u24 v{R.T}, 10240, v1\ns_lshl_b32 s56, s{s_col}, 5\ns_add_u32 s56, s56, {WS_WT}")
    A(f"buffer_load_dwordx4 v[{R.WV}:{R.WV+3}], v{R.T}, s[{S_WS}:{S_WS+3}], s56 offen\nbuffer_load_dwordx4 v[{R.WV+4}:{R.WV+7}], v{R.T}, s[{S_WS}:{S_WS+3}], s56 offen offset:16")

def dc_sel(A, s0, vals):
    A(f"s_and_b32 s55, s{S_J}, 1\ns_cmp_eq_u32 s55, 0")
    for i, (a, b) in enumerate(vals): A(f"s_cselect_b32 s{s0+i}, {a}, {b}")

def gen_tail(A, stamp):
    A("L_tail:")
    dc_sel(A, 42, [(0, 144), (9, 18), (27, 99)])
    A(f"s_lshl_b32 s40, s{S_RB}, 2\ns_lshr_b32 s41, s{S_J}, 1\ns_add_u32 s40, s40, s41")
    A(f"s_mul_i32 s46, s40, {16*1152}\ns_mul_i32 s47, s40, 18496\ns_add_u32 s47, s47, {WS_Z + 288*64}")
    A(f"s_mov_b32 s48, {f32bits(2.0/(576*2048))}\ns_mov_b32 s49, {f32bits(-1.4426950408889634)}")
    A(f"s_and_b32 s40, s{S_RB}, 15\ns_lshl_b32 s40, s40, 4\ns_lshr_b32 s41, s{S_RB}, 4\ns_add_u32 s40, s40, s41")
    A(f"v_bfe_u32 v2, v240, 1, 1\nv_lshlrev_b32 v2, 3, v2\nv_bfe_u32 v3, v240, 2, 2\nv_lshl_add_u32 v2, v3, 1, v2\nv_add_u32 v2, s40, v2\nv_lshlrev_b32 v2, 9, v2")
    A(f"v_and_b32 v3, 1, v240\nv_lshl_add_u32 v2, v3, 8, v2\ns_lshr_b32 s41, s{S_J}, 2\ns_lshl_b32 s50, s41, 7\ns_add_u32 s50, s50, {WS_PF}")
    A(f"s_mul_i32 s40, s40, 73728\ns_mul_i32 s41, s41, 18432\ns_add_u32 s40, s40, s41\ns_bfe_u32 s41, s{S_J}, 0x10001\ns_lshl_b32 s41, s41, 8\ns_add_u32 s40, s40, s41\ns_add_u32 s51, s40, {WS_PART}")
    A(f"s_mov_b32 s52, s{S_WAVE}\ns_mov_b32 s53, 0")
    A("L_tl:")
    A(f"v_and_b32 v4, 15, v240\nv_lshrrev_b32 v5, 4, v240\ns_lshl_b32 s40, s52, 2\nv_add_u32 v5, s40, v5")
    A(f"v_mov_b32 v7, 0x120\nv_cmp_le_u32 vcc, s43, v5\ns_nop 1\nv_cndmask_b32 v6, 0, 1, vcc\nv_cmp_le_u32 vcc, s44, v5\ns_nop 1\nv_addc_co_u32 v6, vcc, 0, v6, vcc")
    A(f"v_lshlrev_b32 v8, 4, v5\nv_add_u32 v8, s42, v8\nv_mad_u32_u24 v8, v6, v7, v8")
    A(f"buffer_load_dwordx4 v[100:103], v8, s[{S_B2}:{S_B2+3}], 0 offen")
    A(f"v_mul_u32_u24 v9, 1152, v4\nv_add_u32 v115, v8, v9\nbuffer_load_dwordx4 v[104:107], v115, s[{S_X}:{S_X+3}], s46 offen")
    A(f"v_lshlrev_b32 v9, 2, v4\nbuffer_load_dword v108, v9, s[{S_WS}:{S_WS+3}], s47 offen")
    A(f"v_lshrrev_b32 v9, 4, v8\nv_bfe_u32 v10, v9, 2, 1\nv_mul_u32_u24 v10, 36864, v10\nv_lshrrev_b32 v11, 3, v9\nv_lshl_add_u32 v10, v11, 11, v10\nv_and_b32 v11, 3, v9\nv_lshl_add_u32 v10, v11, 9, v10\nv_lshl_add_u32 v114, v4, 4, v10")
    A(f"v_cvt_f32_u32 v6, v5\nv_add_f32 v6, 0.5, v6\nv_mul_f32 v6, {1.0/9}, v6\nv_cvt_u32_f32 v6, v6\nv_mul_u32_u24 v7, 9, v6\nv_sub_u32 v7, v5, v7")
    A(f"v_and_b32 v8, 1, v6\nv_mul_u32_u24 v9, 416, v4\nv_lshl_add_u32 v9, v7, 5, v9\nv_mul_u32_u24 v8, {9216+96}, v8\nv_add_u32 v113, v9, v8")
    A("v_add_u32 v8, 1, v6\nv_and_b32 v8, 2, v8\nv_lshlrev_b32 v8, 30, v8\nv_xor_b32 v112, 1.0, v8")
    A("s_cmp_lg_u32 s53, 0\ns_cbranch_scc1 L_t2")
    A(f"s_cmp_ge_u32 s{S_WAVE}, 4\ns_cbranch_scc1 L_t1")
    A(f"s_lshl_b32 s40, s2, 9\ns_lshl_b32 s41, s{S_WAVE}, 7\ns_add_u32 s40, s40, s41\ns_add_u32 s40, s40, {WS_PF}\nv_mov_b32 v6, s{S_NONCE}\nv_mov_b32 v7, 0")
    A(f"s_waitcnt vmcnt(3)\ns_mov_b64 exec, 1\nbuffer_store_dword v6, v7, s[{S_WS}:{S_WS+3}], s40 offen sc0 sc1\ns_mov_b64 exec, -1")
    A("L_t1:")
    st(A, stamp, 4)
    A(f"s_cmp_lg_u32 s{S_WAVE}, 5\ns_cbranch_scc1 L_t3\ns_mov_b32 s55, 0\ns_mov_b64 exec, 0xffff")
    A(f"L_pf:\nbuffer_load_dword v3, v2, s[{S_WS}:{S_WS+3}], s50 offen sc0 sc1\ns_waitcnt vmcnt(0)")
    A(f"v_cmp_ne_u32 vcc, s{S_NONCE}, v3\ns_add_u32 s55, s55, 1\ns_cmp_gt_u32 s55, {SPIN_MAX}\ns_cbranch_scc1 L_t4\ns_cmp_eq_u64 vcc, 0\ns_cbranch_scc1 L_t4\ns_mov_b64 exec, vcc\ns_sleep 3\ns_branch L_pf")
    A("L_t4:\ns_mov_b64 exec, -1\nL_t3:\ns_waitcnt lgkmcnt(0)\ns_barrier")
    A("L_t2:")
    st(A, stamp, 5)
    for jp in range(8):
        dw = (jp & 1) * 8 + (jp >> 1) * 2
        A(f"s_add_u32 s40, s51, {dw*73728}\nbuffer_load_dwordx4 v[{64+4*jp}:{67+4*jp}], v114, s[{S_WS}:{S_WS+3}], s40 offen")
    A(f"ds_read_b128 v[40:43], v113 offset:{pq_addr(0,0)}\nds_read_b128 v[44:47], v113 offset:{pq_addr(0,0)+16}\nds_read_b128 v[48:51], v113 offset:{pq_addr(1,0)}\nds_read_b128 v[52:55], v113 offset:{pq_addr(1,0)+16}")
    A("s_waitcnt vmcnt(8)")
    for x in range(4): A(f"v_lshlrev_b32 v{32+2*x}, 16, v{100+x}\nv_and_b32 v{33+2*x}, 0xffff0000, v{100+x}\nv_lshlrev_b32 v{16+2*x}, 16, v{104+x}\nv_and_b32 v{17+2*x}, 0xffff0000, v{104+x}")
    A("v_lshlrev_b32 v62, 16, v108\nv_mul_f32 v62, 0.5, v62\ns_waitcnt lgkmcnt(0)")
    for e in range(8):
        A(f"v_fma_f32 v{40+e}, v{48+e}, v112, v{40+e}")
    for e in range(8):
        A(("v_add_f32" if e % 2 == 0 else "v_sub_f32") + f" v{40+e}, v{40+e}, v62")
    for e in range(8): A(f"v_mul_f32 v{40+e}, s48, v{40+e}")
    for jp in range(8):
        A(f"s_waitcnt vmcnt({7-jp})")
        for x in range(4):
            src = 64 + 4 * jp + x; t = 8 + 2 * (x % 2)
            A(f"v_lshlrev_b32 v{t}, 16, v{src}\nv_and_b32 v{t+1}, 0xffff0000, v{src}\nv_pk_add_f32 v[{32+2*x}:{33+2*x}], v[{32+2*x}:{33+2*x}], v[{t}:{t+1}]")
    for e in range(8): A(f"v_mul_f32 v{48+e}, s49, v{32+e}")
    for e in range(8): A(f"v_exp_f32 v{48+e}, v{48+e}")
    for e in range(8): A(f"v_add_f32 v{48+e}, 1.0, v{48+e}")
    for e in range(8): A(f"v_rcp_f32 v{48+e}, v{48+e}")
    for e in range(8): A(f"v_mul_f32 v{40+e}, v{40+e}, v{32+e}")
    for e in range(8): A(f"v_fma_f32 v{16+e}, v{40+e}, v{48+e}, v{16+e}")
    for x in range(4): A(f"v_cvt_pk_bf16_f32 v{56+x}, v{16+2*x}, v{17+2*x}")
    A(f"buffer_store_dwordx4 v[56:59], v115, s[{S_OUT}:{S_OUT+3}], s46 offen")
    A(f"s_cmp_lg_u32 s52, 4\ns_cbranch_scc1 L_f2e\ns_mov_b32 s52, 8\ns_mov_b32 s53, 1\ns_branch L_tl")
    A("L_f2e:")
    A(f"s_or_b32 s40, s2, s{S_WAVE}\ns_cmp_lg_u32 s40, 0\ns_cbranch_scc1 L_noe\nv_mov_b32 v2, s{S_NONCE}\nv_mov_b32 v3, 0\ns_mov_b32 s41, {WS_E}\ns_mov_b64 exec, 1\nbuffer_store_dword v2, v3, s[{S_WS}:{S_WS+3}], s41 offen\ns_mov_b64 exec, -1\nL_noe:")
    if stamp:
        A(f"s_waitcnt vmcnt(0)\ns_memtime s[{STB+14}:{STB+15}]\ns_memrealtime s[74:75]\ns_waitcnt lgkmcnt(0)\ns_sub_u32 s74, s74, s94")
        for i in range(8): A(f"s_sub_u32 s{STB+2*i}, s{STB+2*i}, s92\nv_mov_b32 v{24+i}, s{STB+2*i}")
        A("v_mov_b32 v32, s74\nv_mov_b32 v33, s94")
        A(f"s_lshl_b32 s46, s2, 9\ns_lshl_b32 s47, s{S_WAVE}, 6\ns_add_u32 s46, s46, s47\ns_add_u32 s46, s46, {WS_DBG}\nv_mov_b32 v40, 0\ns_mov_b64 exec, 1")
        A(f"buffer_store_dwordx4 v[24:27], v40, s[{S_WS}:{S_WS+3}], s46 offen\nbuffer_store_dwordx4 v[28:31], v40, s[{S_WS}:{S_WS+3}], s46 offen offset:16\nbuffer_store_dwordx2 v[32:33], v40, s[{S_WS}:{S_WS+3}], s46 offen offset:32")
    A("s_endpgm")

def ln_loads8(A):
    A(f"v_and_b32 v2, 63, v0\nv_lshrrev_b32 v3, 3, v2\nv_mul_u32_u24 v3, 1152, v3\nv_and_b32 v4, 7, v2\nv_lshl_add_u32 v3, v4, 4, v3")
    A(f"s_and_b32 s44, s{S_J}, 1\ns_lshl_b32 s44, s44, 2\ns_xor_b32 s44, s44, s{S_WAVE}")
    A(f"s_lshl_b32 s40, s{S_RB}, 3\ns_add_u32 s41, s40, s44\ns_mul_i32 s41, s41, 9216")
    for i in range(9): A(f"buffer_load_dwordx4 v[{64+4*i}:{67+4*i}], v3, s[{S_X}:{S_X+3}], s41 offen offset:{128*i}")
    A(f"s_mov_b32 s45, 1\ns_cmp_ge_u32 s{S_WAVE}, 2\ns_cbranch_scc1 L_l1\ns_mov_b32 s45, 2\ns_xor_b32 s41, s44, 4\ns_add_u32 s41, s40, s41\ns_mul_i32 s41, s41, 9216")
    for i in range(9): A(f"buffer_load_dwordx4 v[{200+4*i}:{203+4*i}], v3, s[{S_X}:{S_X+3}], s41 offen offset:{128*i}")
    A("L_l1:")
    A(f"s_cmp_ge_u32 s{S_WAVE}, 4\ns_cbranch_scc1 L_l3")
    A(f"v_and_b32 v5, 31, v0\nv_lshlrev_b32 v5, 1, v5\ns_lshr_b32 s40, s{S_WAVE}, 1\ns_lshl_b32 s40, s40, 6\ns_mul_i32 s41, s{S_J}, 1152\ns_add_u32 s40, s40, s41")
    for t in range(9): A(f"buffer_load_ushort v{180+t}, v5, s[{S_MISC}:{S_MISC+3}], s40 offen offset:{128*t}")
    A(f"s_cmp_ge_u32 s{S_WAVE}, 2\ns_cbranch_scc1 L_l4\ns_waitcnt vmcnt(18)\ns_branch L_l2\nL_l3:\ns_waitcnt vmcnt(0)\nL_l4:\ns_waitcnt vmcnt(9)\nL_l2:")
def ln8(A):
    T = Asm(); G6.gen_ln(T, False)
    out = []
    skip = False
    for l in T.L:
        t = l.strip()
        if t in ("s_waitcnt vmcnt(9)", "s_mov_b32 s45, 2"): continue
        if t == f"s_lshl_b32 s40, s{S_WAVE}, 7":
            out += ["  s_lshr_b32 s40, s44, 2", "  s_lshl_b32 s40, s40, 10", "  s_and_b32 s41, s44, 3", "  s_lshl_b32 s41, s41, 7", "  s_add_u32 s40, s40, s41"]
            continue
        if t == "v_add_u32 v3, 1024, v3": out.append("  v_xor_b32 v3, 1024, v3"); continue
        if t == "v_add_u32 v4, 1024, v4": out.append("  v_xor_b32 v4, 1024, v4"); continue
        if t.startswith("v_and_b32 v5, 31, v0"): skip = True
        if skip and t.startswith("v_lshlrev_b32 v100"): skip = False
        if skip: continue
        out.append(l)
    A.L += out

def part_ops14(grp):
    ops = []
    for t in range(3):
        acc = ACC + 16 * (3 * grp + t)
        for h in range(2):
            o = 208 + 4 * ((2 * t + h) % 6)
            ops.append("\n".join(f"v_cvt_pk_bf16_f32 v{o+x}, v{acc+8*h+2*x}, v{acc+8*h+2*x+1}" for x in range(2)))
            ops.append("\n".join(f"v_cvt_pk_bf16_f32 v{o+x}, v{acc+8*h+2*x}, v{acc+8*h+2*x+1}" for x in range(2, 4)))
            ops.append(f"s_nop 1\nv_permlane32_swap_b32 v{o}, v{o+2}\nv_permlane32_swap_b32 v{o+1}, v{o+3}\nbuffer_store_dwordx4 v[{o}:{o+3}], v{vG}, s[{S_WS}:{S_WS+3}], s47 offen sc0 sc1\ns_add_u32 s47, s47, 1024")
    return ops
G6.part_ops = part_ops14

def gen_mwave7(A, stamp):
    T = Asm(); G6.gen_mwave(T, False)
    txt = "\n".join(T.L)
    m = G6.gemm_stream(1)
    pre = txt[:txt.index("  s_barrier\n  ds_read_b128".replace("  ds_read_b128", "  v_add_u32 v2, s40, v60"))]
    A.L += pre.split("\n")
    A("s_setprio 2\ns_barrier")
    st(A, stamp, 0)
    lines = []
    for k, (mm, v) in enumerate(m):
        if mm == "mark": cur = v
        if mm == "t" and v == "s_barrier" and (cur // 9) % 4 == 3: lines.append(("t", "s_waitcnt vmcnt(0)"))
        lines.append((mm, v))
    emit_loop(A, lines, "L_g1", start=4, period=36, count=8, total=324)
    st(A, stamp, 1)
    A("s_barrier")
    A(f"s_lshl_b32 s46, s31, 12\nv_add_u32 v243, s46, v{vB0}\nv_add_u32 v246, 32768, v243")
    for t in range(9):
        acc = ACC + 16 * t; o = 248
        for x in range(16): A(f"v_mul_f32_e64 v{acc+x}, v{acc+x}, |v{acc+x}|")
        for x in range(8): A(f"v_cvt_pk_bf16_f32 v{o+x}, v{acc+2*x}, v{acc+2*x+1}")
        for x in range(8): A(f"v_pk_max_i16 v{o+x}, v{o+x}, 0")
        for h in range(2):
            if t < 4: A(f"ds_write_b128 v243, v[{o+4*h}:{o+4*h+3}] offset:{t*8192+h*2048}")
            else: A(f"ds_write_b128 v246, v[{o+4*h}:{o+4*h+3}] offset:{(t-4)*8192+h*2048}")
        if t == 3: A("s_barrier")
    A(f"s_lshl_b32 s47, s2, 2\ns_add_u32 s47, s47, s{S_WAVE}\ns_mul_i32 s47, s47, 18432\ns_add_u32 s47, s47, {WS_PART}")
    A(f"s_lshl_b32 s40, s{S_K0}, 11\nv_add_u32 v{vB}, s40, v{vB0}")
    A("s_waitcnt lgkmcnt(0)\ns_barrier")
    A(f"s_cmp_lt_i32 s{S_XC}, 0\ns_cbranch_scc1 L_m_nx\ns_barrier\ns_barrier\ns_barrier\nL_m_nx:")
    st(A, stamp, 2)
    emit_loop(A, G6.gemm_stream(2), "L_g2", 0, 0, 1, 324)
    st(A, stamp, 3)
    A("s_branch L_tail")

def gen_helper7(A, stamp):
    A("L_helper:")
    A(f"s_sub_u32 s{S_HW}, s{S_WAVE}, 4\nv_and_b32 v{VL}, 63, v0\nv_and_b32 v1, 255, v0\ns_mov_b32 s{S_RT2}, {f32bits(0.7071067811865476)}")
    A(f"s_mov_b32 s{S_RT2+1}, s{S_RT2}")
    A("s_lshr_b32 s40, s2, 5\ns_lshl_b32 s40, s40, 3\ns_and_b32 s41, s2, 7\ns_add_u32 s40, s40, s41\ns_lshl_b32 s40, s40, 2\ns_bfe_u32 s41, s2, 0x20003\ns_add_u32 s40, s40, s41")
    slot_decode(A, 40, 98, 61)
    A(f"s_cmp_lt_i32 s{S_XC}, 0\ns_cbranch_scc1 L_nsd\ns_mov_b32 s40, s{S_XC}")
    slot_decode(A, 40, 99, S_XC)
    A("L_nsd:")
    A(f"s_waitcnt lgkmcnt(0)\ns_add_u32 s{S_NONCE}, s{S_NONCE}, 1")
    T0 = Asm(); G6.gen_loader_pre(T0)
    k = T0.L.index("  s_barrier")
    A.L += T0.L[:k]
    A(f"s_cmp_ge_u32 s{S_HW}, 2\ns_cbranch_scc1 L_h_w0")
    FF.fft_setup(A, R, 1, L_F, 56)
    A(f"s_cmp_ge_u32 s{S_J}, 5\ns_cbranch_scc1 L_nowt")
    G6.tw_dma(A)
    A("L_nowt:")
    A("s_call_b64 s[62:63], L_ld1\ns_call_b64 s[62:63], L_ld1")
    A(f"s_cmp_lt_u32 s{S_J}, 5\ns_cbranch_scc1 L_spf\ns_call_b64 s[62:63], L_ld1\ns_branch L_spf1\nL_spf:")
    def spf(nst):
        A(f"v_mov_b32 v232, v{VL}")
        for i in range((72 * nst + 63) // 64):
            divc(A, 9, 233, 234, 232, 235)
            A(f"v_and_b32 v235, 7, v233\nv_lshrrev_b32 v233, 3, v233\nv_lshl_add_u32 v233, v233, 4, v235\nv_mul_u32_u24 v233, 9216, v233\nv_lshl_add_u32 v233, v234, 7, v233")
            A(f"buffer_load_dword v131, v233, s[{S_W1}:{S_W1+3}], s52 offen\nv_add_u32 v232, 64, v232")
    spf(2)
    A("s_branch L_spf2\nL_spf1:")
    spf(1)
    A("L_spf2:")
    A(f"s_cmp_ge_u32 s{S_J}, 5\ns_cbranch_scc1 L_h_c0\ns_waitcnt vmcnt(21)\ns_branch L_h_c0")
    A("L_h_w0:\nL_h_c0:")
    A("s_waitcnt lgkmcnt(0)\ns_barrier")
    WB = 140
    def wloads(st):
        A(f"s_lshr_b32 s40, s{st}, 5\ns_bfe_u32 s41, s{st}, 0x30002\ns_lshl_b32 s41, s41, 3\ns_add_u32 s40, s40, s41\ns_and_b32 s41, s{st}, 3\ns_lshl_b32 s41, s41, 7\ns_add_u32 s40, s40, s41\ns_mul_i32 s40, s40, 578")
        A(f"v_lshrrev_b32 v{VX}, 5, v{VL}\nv_mul_u32_u24 v{VX}, {64*578}, v{VX}\nv_and_b32 v{LT}, 31, v{VL}\nv_lshl_add_u32 v{VX}, v{LT}, 1, v{VX}")
        for i in range(3):
            A(f"s_add_u32 s41, s{S_HW}, {4*i}\ns_min_u32 s41, s41, 9\ns_lshl_b32 s41, s41, 6\ns_add_u32 s41, s41, s40")
            for u3 in range(4):
                r_ = WB + 8 * i + u3
                A(f"buffer_load_ushort v{r_}, v{VX}, s[32:35], s41 offen\nbuffer_load_ushort v{r_+4}, v{VX}, s[36:39], s41 offen\ns_add_u32 s41, s41, {512*578}")
    def wstores(st, wait):
        A(f"s_mul_i32 s40, s{st}, 10240\ns_add_u32 s40, s40, {WS_WT}\nv_lshrrev_b32 v{VX}, 5, v{VL}\nv_lshlrev_b32 v{VX}, 4, v{VX}\nv_and_b32 v{LT}, 31, v{VL}\nv_lshl_add_u32 v{VX}, v{LT}, 5, v{VX}")
        A(wait)
        for i in range(3):
            for u3 in range(4): A(f"v_lshl_or_b32 v{WB+8*i+u3}, v{WB+8*i+4+u3}, 16, v{WB+8*i+u3}")
            A(f"s_add_u32 s41, s{S_HW}, {4*i}\ns_min_u32 s41, s41, 9\ns_lshl_b32 s41, s41, 10\ns_add_u32 s41, s41, s40")
            A(f"buffer_store_dwordx4 v[{WB+8*i}:{WB+8*i+3}], v{VX}, s[{S_WS}:{S_WS+3}], s41 offen sc0 sc1")
    A(f"s_mov_b32 s43, s2\ns_cmp_ge_i32 s{S_XC}, 0\ns_cbranch_scc1 L_h_c3")
    A("L_wt:")
    wloads(43)
    A(f"s_cmp_ge_u32 s{S_J}, 5\ns_cbranch_scc1 L_h_np0\ns_barrier\nL_h_np0:")
    wstores(43, "s_waitcnt vmcnt(0)")
    A(f"s_cmp_lg_u32 s43, s2\ns_cbranch_scc1 L_h_c3")
    A(f"s_mul_i32 s42, s{S_RB}, 3\ns_add_u32 s42, s42, s{S_J}\ns_sub_u32 s42, s42, 45\ns_cmp_lt_u32 s{S_J}, 5\ns_cselect_b32 s42, 99, s42\ns_cmp_lt_u32 s42, 40\ns_cbranch_scc0 L_h_c3")
    A("s_mul_i32 s43, s42, 43\ns_lshr_b32 s43, s43, 7\ns_mul_i32 s44, s43, 3\ns_sub_u32 s44, s42, s44\ns_add_u32 s44, s44, 5")
    A("s_lshl_b32 s43, s43, 4\ns_and_b32 s45, s44, 1\ns_lshl_b32 s45, s45, 3\ns_add_u32 s43, s43, s45\ns_and_b32 s44, s44, 6\ns_add_u32 s43, s43, s44\ns_nop 1\ns_branch L_wt")
    A("L_h_c3:")
    A(f"s_cmp_ge_u32 s{S_J}, 5\ns_cbranch_scc1 L_h_c4\ns_cmp_ge_u32 s{S_HW}, 2\ns_cbranch_scc1 L_h_c4\ns_call_b64 s[62:63], L_ld1\nL_h_c4:")
    A(f"s_cmp_lt_u32 s{S_HW}, 2\ns_cbranch_scc1 L_h_c5\ns_sub_u32 s31, s{S_WAVE}, 6\nL_h_c5:")
    def dma(gemm, tag):
        A(f"s_cbranch_vccz L_sk{tag}\ns_call_b64 s[62:63], L_ld{gemm}\nL_sk{tag}:".replace("s_cbranch_vccz", f"s_cmp_ge_u32 s{S_HW}, 2\ns_cbranch_scc1"))
    A(f"s_cmp_lt_i32 s{S_XC}, 0\ns_cbranch_scc1 L_b0\ns_waitcnt vmcnt(9)\nL_b0:\ns_barrier")
    A(f"s_cmp_ge_u32 s{S_HW}, 2\ns_cbranch_scc1 L_npr\ns_setprio 3\nL_npr:")
    def iv(gemm, tag, extra=None, wait="s_waitcnt vmcnt(9)"):
        dma(gemm, tag)
        if extra: extra()
        if wait: A(wait)
        A("s_barrier")
    A(f"s_cmp_ge_u32 s{S_HW}, 2\ns_cbranch_scc1 L_wk1")
    A("s_mov_b32 s45, 32\nL_hg1:"); G6.ld_stage(A, 1); A("s_waitcnt vmcnt(9)\ns_barrier\ns_sub_u32 s45, s45, 1\ns_cmp_lg_u32 s45, 0\ns_cbranch_scc1 L_hg1\ns_branch L_j32")
    A("L_wk1:")
    bg = Asm()
    bg.L += g_gen_lines([0], R.POOL)
    bg("s_waitcnt vmcnt(0)\n;BAR\n;BAR\n;NOBAR")
    bg(f"s_cmp_lg_u32 s{S_HW}, 2\ns_cbranch_scc1 L_nb1"); bump_counter(bg, 0, 254); bg("L_nb1:\n;OK")
    bg.L += g_gen_lines([1, 2], R.POOL)
    FF.fft_setup(bg, R, 1, L_F, 56)
    A.L += slice_bars(bg.L, 32, WSL1)
    A("L_j32:")
    def p1():
        A(f"s_cmp_lg_u32 s{S_HW}, 2\ns_cbranch_scc1 L_np1"); poll_counter(A, "L_poll1", 0, R.T); A("L_np1:")
    iv(1, "b32", p1)
    G6.g2_setup(A, 0)
    A("s_waitcnt vmcnt(0)")
    fft_loads(A, 98, R.POOL, 2); w_loads(A, 61)
    A(f"s_cmp_lt_i32 s{S_XC}, 0\ns_cbranch_scc1 L_nx1"); fft_loads(A, 99, XR2, 1); A("L_nx1:")
    iv(2, "b33", wait=None); iv(2, "b34", wait=None); iv(2, "b35", wait=None)
    st(A, stamp, 0)
    A(f"s_cmp_lt_u32 s{S_HW}, 2\ns_cbranch_scc1 L_wl27\ns_waitcnt vmcnt(0)")
    A(f"s_and_b32 s40, s{S_RB}, 15\ns_lshl_b32 s40, s40, 1\ns_add_u32 s40, s40, s31\ns_lshl_b32 s40, s40, 6\nv_add_u32 v{R.T}, s40, v{VL}\ns_mul_i32 s40, s{S_J}, {576*1152}")
    for i in range(3):
        A(f"v_min_u32 v{R.T+1}, 5183, v{R.T}\nv_lshlrev_b32 v{R.T+1}, 7, v{R.T+1}\nbuffer_load_dword v{R.T+2}, v{R.T+1}, s[{S_W2}:{S_W2+3}], s40 offen\nv_add_u32 v{R.T}, 2048, v{R.T}")
    A("L_wl27:\ns_waitcnt vmcnt(27)\ns_mov_b32 s60, 0")
    A("L_fft:")
    for a in range(8):
        p = R.POOL + 2 * a
        A(f"v_and_b32 v{p+1}, 0xffff0000, v{p}\nv_lshlrev_b32 v{p}, 16, v{p}")
    blocks, outs = FF.fft_column_blocks(A, R, S_RT2)
    for nm, b in blocks:
        if nm == "BAR": A("s_barrier")
        else:
            for line in b.L:
                if line.strip() == ";WAITW":
                    A("s_cmp_eq_u32 s60, 0\ns_cbranch_scc1 L_nww\ns_waitcnt vmcnt(0)\nL_nww:")
                    for i in range(8): A(f"v_and_b32 v{R.WP+2*i+1}, 0xffff0000, v{R.WV+i}\nv_lshlrev_b32 v{R.WP+2*i}, 16, v{R.WV+i}")
                else: A.L.append(line)
            if nm == "i2": A(f"s_cmp_ge_u32 s{S_HW}, 2\ns_cbranch_scc1 L_nlw\ns_cmp_eq_u32 s60, 1\ns_cbranch_scc1 L_nlw\ns_waitcnt vmcnt(2)\nL_nlw:")
            if nm == "f4":
                A(f"s_cmp_eq_u32 s60, 1\ns_cbranch_scc1 L_nw2\ns_cmp_lt_i32 s{S_XC}, 0\ns_cbranch_scc1 L_nw2"); w_loads(A, S_XC); A("L_nw2:")
    A(f"s_lshl_b32 s56, s61, 6\ns_add_u32 s56, s56, {WS_Z}")
    for a in range(8):
        A(f"buffer_store_dword v{outs[a]}, v{R.GZ}, s[{S_WS}:{S_WS+3}], s56 offen sc0 sc1")
        if a < 7: A(f"s_add_u32 s56, s56, {16*18496}")
    A(f"s_cmp_eq_u32 s60, 1\ns_cbranch_scc1 L_fftd\ns_cmp_lt_i32 s{S_XC}, 0\ns_cbranch_scc1 L_fftd")
    A(f"s_mov_b32 s61, s{S_XC}\ns_mov_b32 s60, 1")
    for a in range(8): A(f"v_mov_b32 v{R.POOL+2*a}, v{XR2+a}")
    A("s_barrier\ns_branch L_fft\nL_fftd:")
    st(A, stamp, 1)
    A(f"s_cmp_ge_u32 s{S_HW}, 2\ns_cbranch_scc1 L_wk2")
    for grp in range(3):
        if grp: G6.g2_setup(A, grp)
        A(f"s_mov_b32 s45, {9 if grp == 0 else 12}\nL_hl{grp}:"); G6.ld_stage(A, 2)
        A(f"s_waitcnt vmcnt(9)\ns_barrier\ns_sub_u32 s45, s45, 1\ns_cmp_lg_u32 s45, 0\ns_cbranch_scc1 L_hl{grp}")
    A("s_waitcnt vmcnt(0)\ns_barrier\ns_barrier\ns_branch L_tail")
    A("L_wk2:")
    W = Asm()
    W("s_waitcnt vmcnt(0)\n;BAR\n;BAR\n;NOBAR")
    W(f"s_cmp_lg_u32 s{S_HW}, 2\ns_cbranch_scc1 L_nb2"); bump_counter(W, 1, 2); W("L_nb2:\n;OK")
    W.L += g_gen_lines([3, 4], 8)
    pre = slice_bars(W.L, P3_START, WSL1)
    W = Asm()
    W(";NOBAR")
    poll_counter(W, "L_poll2", 1, 2)
    W(f"s_lshl_b32 s40, s{S_RB}, 2\ns_lshr_b32 s41, s{S_J}, 1\ns_add_u32 s40, s40, s41\ns_mul_i32 s40, s40, 18496\ns_add_u32 s40, s40, {WS_Z}\ns_lshl_b32 s41, s31, 6\ns_add_u32 s40, s40, s41")
    W(f"v_lshrrev_b32 v2, 2, v{VL}\nv_lshlrev_b32 v2, 7, v2\nv_and_b32 v3, 3, v{VL}\nv_lshl_add_u32 v2, v3, 4, v2\ns_lshl_b32 s42, s31, 13\ns_add_u32 s42, s42, {L_F}")
    for e in range(8): W(f"s_add_u32 m0, s42, {1024*e}\ns_add_u32 s41, s40, {2048*e}\nbuffer_load_dwordx4 v2, s[{S_WS}:{S_WS+3}], s41 offen lds")
    W(f"v_lshrrev_b32 v3, 5, v{VL}\nv_lshlrev_b32 v3, 10, v3\nv_and_b32 v4, 31, v{VL}\nv_lshl_add_u32 v3, v4, 1, v3\ns_add_u32 s41, s40, {128*128}")
    for i in range(8): W(f"buffer_load_ushort v{8+i}, v3, s[{S_WS}:{S_WS+3}], s41 offen offset:{128*i}")
    W(";OK\n;BAR")
    W(f"v_lshrrev_b32 v2, 5, v{VL}\nv_lshlrev_b32 v2, 3, v2\nv_bfe_u32 v3, v{VL}, 2, 2\nv_add_u32 v2, v2, v3\nv_lshlrev_b32 v2, 6, v2")
    W(f"v_bfe_u32 v3, v{VL}, 4, 1\nv_lshlrev_b32 v3, 5, v3\nv_and_b32 v4, 3, v{VL}\nv_lshlrev_b32 v4, 3, v4\nv_add3_u32 v2, v2, v3, v4\nv_add_u32 v2, s42, v2")
    W(";BAR\n;BAR\ns_waitcnt vmcnt(0)")
    for kap in range(8):
        b_ = 24 + 4 * kap
        W(f"ds_read_b64_tr_b16 v[{b_}:{b_+1}], v2 offset:{kap*1024}\nds_read_b64_tr_b16 v[{b_+2}:{b_+3}], v2 offset:{kap*1024+256}")
        if kap == 4: W("s_waitcnt lgkmcnt(0)")
    for x in range(4): W(f"v_lshl_or_b32 v{56+x}, v{9+2*x}, 16, v{8+2*x}")
    W(f"v_and_b32 v2, 1, v{VL}\nv_cmp_eq_u32 s[58:59], 0, v2\nv_mov_b32 v3, -1.0\nv_mov_b32 v4, 1.0\nv_cndmask_b32 v3, v3, v4, s[58:59]\ns_waitcnt lgkmcnt(0)")
    accs = [8] + [gt_reg(t - 1, 0) for t in range(1, 5)]
    PQr = lambda t: gt_reg(t, 0) + 16
    ADr = lambda t: gt_reg(t, 0) + 24
    def post(t):
        acc = accs[t]
        for rr in range(8): W(f"v_cndmask_b32 v{acc+rr}, v{acc+8+rr}, v{acc+rr}, s[58:59]")
        for rr in range(8): W(f"v_mul_f32 v{PQr(t)+rr}, v3, v{acc+rr}")
        for rr in range(8): W(f"v_add_f32_dpp v{PQr(t)+rr}, v{acc+rr}, v{PQr(t)+rr} quad_perm:[1,0,3,2] row_mask:0xf bank_mask:0xf")
    for t in range(5):
        acc = accs[t]
        for kap in range(9):
            g = gt_reg(t, kap); b_ = 24 + 4 * kap
            c = "0" if kap == 0 else f"v[{acc}:{acc+15}]"
            W(f"v_mfma_f32_32x32x16_bf16 v[{acc}:{acc+15}], v[{g}:{g+3}], v[{b_}:{b_+3}], {c}")
        if t > 0: W("s_nop 2"); post(t - 1)
    W(f"v_bfe_u32 v4, v{VL}, 1, 4\nv_mul_u32_u24 v4, 416, v4\nv_mul_u32_u24 v5, 9216, v2\ns_mul_i32 s56, s31, {RHALF}\nv_add3_u32 v4, v4, v5, s56\nv_add_u32 v4, 9216, v4")
    W(f"v_lshrrev_b32 v5, 5, v{VL}\nv_lshlrev_b32 v5, 4, v5\nv_sub_u32 v6, 0x180, v5\nv_cndmask_b32 v5, v6, v5, s[58:59]\nv_add_u32 v4, v4, v5")
    W("v_mov_b32 v5, -4\nv_mov_b32 v6, 4\nv_cndmask_b32 v5, v5, v6, s[58:59]")
    post(4)
    for t in range(5):
        for rr in range(8): W(f"v_mad_i32_i24 v{ADr(t)+rr}, v5, {8*(rr>>2) + (rr&3)}, v4")
        W("v_lshl_add_u32 v4, v5, 4, v4")
    A.L += pre + slice_bars(W.L, 35 - P3_START, WSL2)
    st(A, stamp, 2)
    for t in range(5):
        for rr in range(8): A(f"ds_write_b32 v{ADr(t)+rr}, v{PQr(t)+rr}")
    st(A, stamp, 3)
    A("s_branch L_tail")
    for gemm in (1, 2):
        A(f"L_ld{gemm}:"); G6.ld_stage(A, gemm); A("s_setpc_b64 s[62:63]")

CODE_PF7 = 5
P3_START = 19
WSL1 = 32
WSL2 = 48
def gen_kernel(name, stamp=False):
    A = Asm()
    A("main_entry:")
    if stamp: A("s_memtime s[92:93]\ns_memrealtime s[94:95]")
    A("s_cmp_ge_u32 s2, 256\ns_cbranch_scc1 L_exit")
    A("s_getpc_b64 s[42:43]\ns_bfe_u32 s40, s2, 0x20003\ns_lshl_b32 s40, s40, 14\nv_subrev_u32 v131, 256, v0\nv_cmp_gt_u32 vcc, 0x80, v131\nv_lshlrev_b32 v131, 7, v131\nv_add_u32 v131, s40, v131\nv_min_u32 v131, CODE_BYTES, v131")
    A("s_and_saveexec_b64 s[44:45], vcc\ns_cbranch_execz L_npf\nglobal_load_dword v131, v131, s[42:43]\nL_npf:\ns_mov_b64 exec, s[44:45]")
    A("v_mov_b32 v71, 0\nv_mov_b32 v242, 0\nv_mov_b32 v243, 0\nv_mov_b32 v244, 0\nv_mov_b32 v245, 0\nv_mov_b32 v246, 0\nv_mov_b32 v247, 0\nv_mov_b32 v250, 0\nv_mov_b32 v251, 0\nv_mov_b32 v4, 0")
    A("s_load_dwordx2 s[4:5], s[0:1], 0\ns_load_dwordx2 s[8:9], s[0:1], 32\ns_load_dwordx2 s[12:13], s[0:1], 48\ns_load_dwordx2 s[16:17], s[0:1], 80")
    A(f"s_load_dwordx2 s[20:21], s[0:1], 40\ns_load_dwordx2 s[32:33], s[0:1], 8\ns_load_dwordx2 s[36:37], s[0:1], 16")
    A(f"s_load_dwordx2 s[{S_OUT}:{S_OUT+1}], s[0:1], 64\ns_load_dwordx2 s[{S_B2}:{S_B2+1}], s[0:1], 56\ns_load_dwordx2 s[{S_DBGP}:{S_DBGP+1}], s[0:1], 72")
    A(f"v_lshrrev_b32 v1, 6, v0\ns_nop 0\nv_readfirstlane_b32 s{S_WAVE}, v1")
    A(f"s_mov_b32 s6, 2359296\ns_mov_b32 s7, 0x00020000\ns_mov_b32 s10, 5308416\ns_mov_b32 s11, 0x00020000\ns_mov_b32 s14, 5308416\ns_mov_b32 s15, 0x00020000")
    A(f"s_mov_b32 s18, {WS_SIZE}\ns_mov_b32 s19, 0x00020000\ns_mov_b32 s22, 9216\ns_mov_b32 s23, 0x00020000")
    A(f"s_mov_b32 s34, {2048*578}\ns_mov_b32 s35, 0x00020000\ns_mov_b32 s38, {2048*578}\ns_mov_b32 s39, 0x00020000")
    A(f"s_mov_b32 s{S_OUT+2}, 2359296\ns_mov_b32 s{S_OUT+3}, 0x00020000\ns_mov_b32 s{S_B2+2}, 1152\ns_mov_b32 s{S_B2+3}, 0x00020000")
    A(f"s_and_b32 s40, s2, 6\ns_bfe_u32 s41, s2, 0x10003\ns_add_u32 s{S_J}, s40, s41")
    A(f"s_and_b32 s40, s2, 1\ns_lshl_b32 s40, s40, 4\ns_lshr_b32 s41, s2, 4\ns_add_u32 s{S_RB}, s40, s41")
    A(f"s_and_b32 s40, s{S_RB}, 15\ns_cmp_ge_u32 s40, 9\ns_cselect_b32 s41, 9, 0\ns_sub_u32 s40, s40, s41\ns_lshl_b32 s{S_K0}, s40, 2")
    A(f"s_mul_i32 s40, s{S_RB}, 3\ns_add_u32 s40, s40, s{S_J}\ns_add_u32 s40, s40, 251\ns_cmp_lt_u32 s40, 296\ns_cselect_b32 s{S_XC}, s40, -1\ns_cmp_lt_u32 s{S_J}, 5\ns_cselect_b32 s{S_XC}, -1, s{S_XC}")
    A("s_waitcnt lgkmcnt(0)")
    A(f"s_load_dword s{S_NONCE}, s[16:17], {WS_E}")
    A(f"s_and_b32 s40, s{S_WAVE}, 6\ns_cmp_eq_u32 s40, 4\ns_cbranch_scc1 L_helper")
    ln_loads8(A)
    ln8(A)
    A(f"s_cmp_ge_u32 s{S_WAVE}, 4\ns_cbranch_scc1 L_helper")
    A(f"s_waitcnt lgkmcnt(0)\ns_add_u32 s{S_NONCE}, s{S_NONCE}, 1")
    gen_mwave7(A, stamp)
    gen_helper7(A, stamp)
    gen_tail(A, stamp)
    A("L_exit:\ns_endpgm\ncode_end:\n.set CODE_BYTES, code_end-main_entry-64")
    return kernel_header(name) + A.text() + kernel_desc(name, 256, 100) + data_section()

if __name__ == "__main__":
    import sys
    stamp = len(sys.argv) > 1
    hdr = open("cdna_kernels/" + NAME + ".s.ref").read().split("; Override")[0]
    src = hdr + f"; @launch grid=(256,1,1) block=(512,1,1) lds={LDS_BYTES}\n" + '.amdgcn_target "amdgcn-amd-amdhsa--gfx950"\n' + gen_kernel(NAME + "_kernel", stamp)
    open("v27.s", "w").write(src)
```
